```python
import torch

def _softmax(x, axis=-1):
    return torch.softmax(x, dim=axis)
def _gelu(x):
    return torch.nn.functional.gelu(x, approximate="tanh")
def _silu(x):
    return torch.nn.functional.silu(x)
def _sigmoid(x):
    return torch.sigmoid(x)
def _layernorm(x, axis=-1, eps=1e-5):
    m = x.mean(dim=axis, keepdim=True)
    v = x.var(dim=axis, keepdim=True, unbiased=False)
    return (x - m) / torch.sqrt(v + eps)
def _scatter_add(tgt, idx, src, axis=0):
    return tgt.clone().index_add_(axis, idx, src)
def _segment_sum(src, seg, n):
    out = torch.zeros((n,) + src.shape[1:], dtype=src.dtype)
    return out.index_add_(0, seg, src)
def _pad(x, pw):
    flat = tuple(v for pair in reversed(pw) for v in pair)
    return torch.nn.functional.pad(x, flat)

kernel_name = 'interleave_layers__linear_kernel_hedgehog__dense_activation_silu__prompt'

def setup_inputs():

    _w = (lambda a: (lambda t: t.to(torch.bfloat16) if t.is_floating_point() else t)(torch.as_tensor(a)))
    def _A_setup():
        B, S, D, H = 1, 2048, 512, 32
        Dh = D // H
        return {
            "x": _w((lambda *s: torch.randn(*s, dtype=torch.bfloat16) * 0.05)(B, S, D)),
            "wqkv": _w((lambda *s: torch.randn(*s, dtype=torch.bfloat16) * 0.4)(D, 3 * D)),
            "w_phi": _w((lambda *s: torch.randn(*s, dtype=torch.bfloat16) * 0.4)(H, Dh, Dh) * (Dh ** -0.5)),
            "wo": _w((lambda *s: torch.randn(*s, dtype=torch.bfloat16) * 0.05)(D, D)),
        }
    _A_in = _A_setup()

    def _B_setup():
        B, S, D, F = 1, 2048, 512, 1792
        return {
            "x": _w((lambda *s: torch.randn(*s, dtype=torch.bfloat16) * 0.05)(B, S, D)),
            "w1": _w((lambda *s: torch.randn(*s, dtype=torch.bfloat16) * 1.6)(D, F) * (D ** -0.5)),
            "w2": _w((lambda *s: torch.randn(*s, dtype=torch.bfloat16) * 1.6)(F, D) * (F ** -0.5)),
        }
    _B_in = _B_setup()

    return {
        "A_x": _A_in["x"],
        "A_wqkv": _A_in["wqkv"],
        "A_w_phi": _A_in["w_phi"],
        "A_wo": _A_in["wo"],
        "B_x": _B_in["x"],
        "B_w1": _B_in["w1"],
        "B_w2": _B_in["w2"],
    }

def reference(A_x, A_wqkv, A_w_phi, A_wo, B_x, B_w1, B_w2):
    def _A_ref(x, wqkv, w_phi, wo):
        B, S, D = x.shape
        H = 32; Dh = D // H
        qkv = (lambda x, *d: x.permute(*d))((x @ wqkv).reshape(B, S, 3, H, Dh), 2, 0, 3, 1, 4)
        q, k, v = qkv[0], qkv[1], qkv[2]
        pq = torch.einsum("bhsd,hdf->bhsf", q, w_phi)
        pk = torch.einsum("bhsd,hdf->bhsf", k, w_phi)
        phi_q = torch.concatenate([_softmax(pq, axis=-1), _softmax(-pq, axis=-1)], axis=-1)
        phi_k = torch.concatenate([_softmax(pk, axis=-1), _softmax(-pk, axis=-1)], axis=-1)
        kv = torch.einsum("bhsf,bhsd->bhfd", phi_k, v)
        z  = torch.einsum("bhsf->bhf", phi_k)
        num = torch.einsum("bhqf,bhfd->bhqd", phi_q, kv)
        den = torch.einsum("bhqf,bhf->bhq", phi_q, z)[..., None] + 1e-6
        o = num / den
        return (lambda x, *d: x.permute(*d))(o, 0, 2, 1, 3).reshape(B, S, D) @ wo

    def _B_ref(x, w1, w2):
        h = torch.einsum("bsd,df->bsf", x, w1)
        h = _silu(h)
        out = torch.einsum("bsf,fd->bsd", h, w2)
        return out

    x = A_x
    x = x + _A_ref(_layernorm(x, axis=-1), A_wqkv, A_w_phi, A_wo)
    x = x + _B_ref(_layernorm(x, axis=-1), B_w1, B_w2)
    x = x + _A_ref(_layernorm(x, axis=-1), A_wqkv, A_w_phi, A_wo)
    x = x + _B_ref(_layernorm(x, axis=-1), B_w1, B_w2)
    return x
```

```python
import re

REG_RE = re.compile(r'\b([vas])(\d+)\b|\b([vas])\[(\d+):(\d+)\]|\b(vcc|exec|m0|scc)\b')

TRANS = ('v_exp_f32', 'v_log_f32', 'v_rcp_f32', 'v_rsq_f32', 'v_sqrt_f32', 'v_sin_f32', 'v_cos_f32')


def regs_of(opnd):
    out = set()
    for m in REG_RE.finditer(opnd):
        if m.group(1):
            out.add((m.group(1), int(m.group(2))))
        elif m.group(3):
            for i in range(int(m.group(4)), int(m.group(5)) + 1):
                out.add((m.group(3), i))
        else:
            out.add((m.group(6), 0))
    return out


def split_ops(s):
    ops, depth, cur = [], 0, ''
    for ch in s:
        if ch == '[':
            depth += 1
        elif ch == ']':
            depth -= 1
        if ch == ',' and depth == 0:
            ops.append(cur.strip())
            cur = ''
        else:
            cur += ch
    if cur.strip():
        ops.append(cur.strip())
    return ops


class Inst:
    __slots__ = ('text', 'op', 'kind', 'wr', 'rd', 'passes', 'srcC', 'srcAB', 'states', 'wide_store', 'lds_dma')

    def __init__(self, text):
        self.text = text
        t = text.strip()
        parts = t.split(None, 1)
        self.op = parts[0]
        rest = parts[1] if len(parts) > 1 else ''
        ops = split_ops(rest)
        self.wr, self.rd = set(), set()
        self.passes = 0
        self.srcC, self.srcAB = set(), set()
        self.states = 1
        self.wide_store = False
        self.lds_dma = False
        op = self.op
        if op.startswith('v_mfma'):
            self.kind = 'mfma'
            self.passes = 8 if '32x32' in op else 4
            self.wr = regs_of(ops[0])
            self.srcAB = regs_of(ops[1]) | regs_of(ops[2])
            self.srcC = regs_of(ops[3])
            self.rd = self.srcAB | self.srcC
        elif op.startswith('v_'):
            self.kind = 'valu'
            if op.startswith('v_cmp'):
                self.wr = regs_of(ops[0])
                for o in ops[1:]:
                    self.rd |= regs_of(o)
            elif 'permlane' in op and 'swap' in op:
                self.wr = regs_of(ops[0]) | regs_of(ops[1])
                self.rd = set(self.wr)
            elif op.startswith(('v_add_co', 'v_sub_co', 'v_addc_co', 'v_subb_co', 'v_subrev_co')):
                self.wr = regs_of(ops[0]) | regs_of(ops[1])
                for o in ops[2:]:
                    self.rd |= regs_of(o)
            else:
                self.wr = regs_of(ops[0])
                for o in ops[1:]:
                    self.rd |= regs_of(o)
                if op.startswith(('v_fmac', 'v_dot2c', 'v_pk_fmac', 'v_writelane')):
                    self.rd |= self.wr
                if op.startswith('v_cndmask') and len(ops) == 3:
                    self.rd.add(('vcc', 0))
        elif op.startswith('ds_'):
            self.kind = 'ds'
            if op.startswith(('ds_read', 'ds_bpermute', 'ds_permute', 'ds_swizzle')):
                self.wr = regs_of(ops[0])
                for o in ops[1:]:
                    self.rd |= regs_of(o)
            else:
                for o in ops:
                    self.rd |= regs_of(o)
        elif op.startswith(('buffer_', 'global_', 'flat_')):
            self.kind = 'vmem'
            is_lds = bool(re.search(r'\blds\b', rest)) or '_lds_' in op
            self.lds_dma = is_lds
            if is_lds:
                for o in ops:
                    self.rd |= regs_of(o)
                self.rd.add(('m0', 0))
            elif 'load' in op:
                self.wr = regs_of(ops[0])
                for o in ops[1:]:
                    self.rd |= regs_of(o)
            elif 'atomic' in op and re.search(r'\bsc0\b', rest):
                if op.startswith('buffer_'):
                    self.wr = regs_of(ops[0])
                    for o in ops:
                        self.rd |= regs_of(o)
                else:
                    self.wr = regs_of(ops[0])
                    for o in ops[1:]:
                        self.rd |= regs_of(o)
            else:
                for o in ops:
                    self.rd |= regs_of(o)
                if 'store' in op and ('x4' in op or 'x3' in op):
                    self.wide_store = True
        elif op.startswith('s_'):
            self.kind = 'salu'
            if op == 's_nop':
                self.states = int(ops[0], 0) + 1
            elif op.startswith(('s_cmp', 's_cbranch', 's_branch', 's_waitcnt', 's_barrier', 's_endpgm', 's_setprio',
                                's_sleep', 's_bitcmp')):
                for o in ops:
                    self.rd |= regs_of(o)
            else:
                if ops:
                    self.wr = regs_of(ops[0])
                for o in ops[1:]:
                    self.rd |= regs_of(o)
                if 'saveexec' in op:
                    self.wr.add(('exec', 0))
        else:
            raise ValueError('unknown instruction: ' + text)


def vset(s):
    return {r for r in s if r[0] in ('v', 'a')}


def sset(s):
    return {r for r in s if r[0] in ('s', 'vcc')}


def need_states(p, c):
    n = 0
    if p.kind == 'mfma':
        D = p.wr
        ps = p.passes
        if c.kind == 'mfma':
            if D & c.srcAB:
                n = max(n, {4: 8, 8: 12}[ps])
            if D & c.srcC:
                if not (c.srcC == D and c.passes == ps):
                    n = max(n, {4: 6, 8: 10}[ps])
            elif D & c.wr:
                n = max(n, {4: 6, 8: 10}[ps])
        else:
            if D & (c.rd | c.wr):
                n = max(n, {4: 8, 8: 12}[ps])
            if c.kind == 'valu' and (p.srcC & c.wr):
                n = max(n, {4: 3, 8: 7}[ps])
    elif p.kind == 'valu':
        w = vset(p.wr)
        if c.kind == 'mfma' and (w & c.rd):
            n = max(n, 2)
        if c.kind == 'valu':
            if 'permlane' in c.op and (w & c.rd):
                n = max(n, 2)
            if c.op.startswith(('v_readlane', 'v_readfirstlane')) and (w & c.rd):
                n = max(n, 1)
            if 'dpp' in c.text and (w & c.rd):
                n = max(n, 2)
            if p.op.startswith(TRANS) and not c.op.startswith(TRANS) and (w & (c.rd | c.wr)):
                n = max(n, 1)
            sw = sset(p.wr)
            if sw & c.rd:
                n = max(n, 4 if c.op.startswith(('v_readlane', 'v_writelane')) else 2)
            if ('exec', 0) in p.wr:
                n = max(n, 4)
        if c.kind == 'mfma' and ('exec', 0) in p.wr:
            n = max(n, 4)
        if c.kind in ('vmem',) and (sset(p.wr) & c.rd):
            n = max(n, 5)
        if c.kind in ('vmem', 'ds') and p.op.startswith(TRANS) and (w & c.rd):
            n = max(n, 1)
        if c.kind == 'salu' and (sset(p.wr) & c.rd):
            n = max(n, 4)
    elif p.kind == 'vmem':
        if p.wide_store and (vset(p.rd) & c.wr) and c.kind != 'salu':
            n = max(n, 2)
    elif p.kind == 'salu':
        if ('m0', 0) in p.wr and c.lds_dma:
            n = max(n, 1)
    return n


class Asm:
    def __init__(self):
        self.items = []

    def I(self, text):
        for line in text.strip().split('\n'):
            line = line.split(';')[0].strip()
            if not line:
                continue
            self.items.append(('i', Inst(line)))

    __call__ = I

    def label(self, name):
        self.items.append(('l', name))

    def raw(self, text):
        self.items.append(('r', text))

    def comment(self, text):
        self.items.append(('r', '; ' + text))

    def nop(self, n):
        while n > 0:
            k = min(n, 16)
            self.I(f's_nop {k - 1}')
            n -= k

    def finalize(self):
        out = []
        hist = []
        WINDOW = 24
        for kind, it in self.items:
            if kind == 'r':
                out.append(it)
                continue
            if kind == 'l':
                out.append(it + ':')
                continue
            c = it
            need = 0
            dist = 0
            for p in reversed(hist):
                if dist >= WINDOW:
                    break
                n = need_states(p, c)
                if n > dist:
                    need = max(need, n - dist)
                dist += p.states
            while need > 0:
                k = min(need, 16)
                nop = Inst(f's_nop {k - 1}')
                out.append('  ' + nop.text)
                hist.append(nop)
                need -= k
            out.append('  ' + c.text)
            hist.append(c)
            if len(hist) > 64:
                hist = hist[-48:]
            if c.op in ('s_endpgm', 's_branch'):
                hist = []
        return '\n'.join(out) + '\n'


def magic_div(d, maxv):
    for sh in range(8, 24):
        mul = -(-(1 << sh) // d)
        if all(((u * mul) >> sh) == u // d for u in range(maxv + 1)) and mul * maxv < (1 << 31):
            return mul, sh
    raise ValueError
```

```python
import sys, os
sys.path.insert(0, os.path.dirname(os.path.abspath(__file__)))
from asmlib import Asm, magic_div

NAME = 'interleave_layers__linear_kernel_hedgehog__dense_activation_silu__prompt'

WS_FLAGS = 0x0
WS_KV = 0x10000
KV_HEAD = 2304
KV_LAYER = 32 * KV_HEAD
WS_LAYER = 0x1000000
WS_XA = 0x100000
WS_XB = 0x300000
WS_PHIQ = 0x500000
WS_H = 0x900000
WS_SIZE = 0x10000000

LOG2E = 0x3fb8aa3b

S_WG = 's2'
SRD_A = 's[4:7]'
SRD_W = 's[8:11]'
SRD_WS = 's[12:15]'
SRD_O = 's[40:43]'
S_WAVE = 's36'
S_LAYER = 's37'
S_RB = 's38'
S_CB = 's39'
S_LOFF = 's44'


def common_prologue(a, layer):
    a('s_cmp_ge_u32 s2, 256')
    a('s_cbranch_scc1 L_exit')
    a('s_load_dwordx16 s[16:31], s[0:1], 0')
    a('s_load_dwordx4 s[32:35], s[0:1], 64')
    a(f's_mov_b32 {S_LAYER}, {layer}')
    a(f's_mov_b32 {S_LOFF}, {layer * WS_LAYER}')
    a('v_lshrrev_b32 v2, 6, v0')
    a('v_and_b32 v1, 63, v0')
    a(f'v_readfirstlane_b32 {S_WAVE}, v2')
    a('s_waitcnt lgkmcnt(0)')
    a('s_mov_b32 s12, s34')
    a('s_mov_b32 s13, s35')
    a(f's_mov_b32 s14, {WS_SIZE}')
    a('s_mov_b32 s15, 0x20000')


def srd(a, dst, ptr_lo, nbytes):
    d = int(dst[2:dst.index(':')])
    a(f's_mov_b32 s{d}, s{ptr_lo}')
    a(f's_mov_b32 s{d+1}, s{ptr_lo+1}')
    a(f's_mov_b32 s{d+2}, {nbytes}')
    a(f's_mov_b32 s{d+3}, 0x20000')


def vr(b, n=1):
    return f'v{b}' if n == 1 else f'v[{b}:{b+n-1}]'


def ar(b, n=1):
    return f'a{b}' if n == 1 else f'a[{b}:{b+n-1}]'


def MF32(a, d, A, B, C):
    a(f'v_mfma_f32_32x32x16_bf16 {d}, {A}, {B}, {C}')


def MF16(a, d, A, B, C):
    a(f'v_mfma_f32_16x16x32_bf16 {d}, {A}, {B}, {C}')


def allreduce32_pair(a, x, y, t, op):
    a(f'v_permlane32_swap_b32 v{x}, v{y}')
    a(f'{op} v{x}, v{x}, v{y}')
    a(f'v_mov_b32 v{t}, v{x}')
    a(f'v_permlane32_swap_b32 v{x}, v{t}')


WB = 8192
P1_KVR = 0
P1_CS = P1_KVR + 4608
P1_ST = P1_CS + 512
P1_WPHI = P1_ST + 1024
P1_LDS = WB + 98304


def p1_wdma(a, tag):
    mul, sh = magic_div(12, 191)
    a(f's_cmp_eq_u32 {S_WAVE}, 0')
    a(f's_cbranch_scc1 L_p1w_skip{tag}')
    a(f's_sub_u32 s45, {S_WAVE}, 1')
    a('s_lshl_b32 s46, s45, 6')
    a('v_add_u32 v3, s46, v1')
    a(f'v_mul_u32_u24 v4, {mul}, v3')
    a(f'v_lshrrev_b32 v4, {sh}, v4')
    a('v_mul_u32_u24 v5, 12, v4')
    a('v_sub_u32 v5, v3, v5')
    a('v_lshrrev_b32 v6, 2, v5')
    a('v_and_b32 v5, 3, v5')
    a('v_mul_u32_u24 v3, 3072, v4')
    a('v_lshl_add_u32 v3, v6, 10, v3')
    a('v_lshl_add_u32 v3, v5, 4, v3')
    a(f's_lshl_b32 s46, {S_CB}, 6')
    a('s_lshl_b32 s47, s45, 10')
    a(f's_add_u32 s47, s47, {WB}')
    a('s_mov_b32 s48, 0')
    a.label(f'L_p1w_loop{tag}')
    a('s_mov_b32 m0, s47')
    a('s_add_u32 s47, s47, 3072')
    a(f'buffer_load_dwordx4 v3, {SRD_W}, s46 offen lds')
    a('s_add_u32 s46, s46, 49152')
    a('s_add_u32 s48, s48, 1')
    a('s_cmp_lt_u32 s48, 32')
    a(f's_cbranch_scc1 L_p1w_loop{tag}')
    a.label(f'L_p1w_skip{tag}')


def softmax16(a, P, c, outp, outn, T):
    mx, w, t2, bp, bn = T, T + 1, T + 2, T + 4, T + 6
    EP, EN = T + 8, T + 16
    a(f'v_max3_f32 v{mx}, v{P}, v{P+1}, v{P+2}')
    a(f'v_max3_f32 v{w}, -v{P}, -v{P+1}, -v{P+2}')
    a(f'v_max3_f32 v{mx}, v{mx}, v{P+3}, v{P+4}')
    a(f'v_max3_f32 v{w}, v{w}, -v{P+3}, -v{P+4}')
    a(f'v_max3_f32 v{mx}, v{mx}, v{P+5}, v{P+6}')
    a(f'v_max3_f32 v{w}, v{w}, -v{P+5}, -v{P+6}')
    a(f'v_max_f32 v{mx}, v{mx}, v{P+7}')
    a(f'v_max_f32 v{w}, v{w}, -v{P+7}')
    allreduce32_pair(a, mx, w, t2, 'v_max_f32')
    a(f'v_mul_f32 v{bp}, v{mx}, -v{c}')
    a(f'v_mul_f32 v{bn}, v{t2}, -v{c}')
    for i in range(4):
        a(f'v_pk_fma_f32 v[{EP+2*i}:{EP+2*i+1}], v[{P+2*i}:{P+2*i+1}], v[{c}:{c+1}], v[{bp}:{bp+1}] op_sel:[0,0,0] op_sel_hi:[1,0,0]')
        a(f'v_pk_fma_f32 v[{EN+2*i}:{EN+2*i+1}], v[{P+2*i}:{P+2*i+1}], v[{c}:{c+1}], v[{bn}:{bn+1}] op_sel:[0,0,0] op_sel_hi:[1,0,0] neg_lo:[0,1,0] neg_hi:[0,1,0]')
    for i in range(8):
        a(f'v_exp_f32 v{EP+i}, v{EP+i}')
    for i in range(8):
        a(f'v_exp_f32 v{EN+i}, v{EN+i}')
    sp, sn = T, T + 2
    a(f'v_pk_add_f32 v[{sp}:{sp+1}], v[{EP}:{EP+1}], v[{EP+2}:{EP+3}]')
    a(f'v_pk_add_f32 v[{bp}:{bp+1}], v[{EP+4}:{EP+5}], v[{EP+6}:{EP+7}]')
    a(f'v_pk_add_f32 v[{sn}:{sn+1}], v[{EN}:{EN+1}], v[{EN+2}:{EN+3}]')
    a(f'v_pk_add_f32 v[{bn}:{bn+1}], v[{EN+4}:{EN+5}], v[{EN+6}:{EN+7}]')
    a(f'v_pk_add_f32 v[{sp}:{sp+1}], v[{sp}:{sp+1}], v[{bp}:{bp+1}]')
    a(f'v_pk_add_f32 v[{sn}:{sn+1}], v[{sn}:{sn+1}], v[{bn}:{bn+1}]')
    a(f'v_add_f32 v{sp}, v{sp}, v{sp+1}')
    a(f'v_add_f32 v{sn}, v{sn}, v{sn+1}')
    a(f'v_permlane32_swap_b32 v{sp}, v{sn}')
    a(f'v_add_f32 v{sp}, v{sp}, v{sn}')
    a(f'v_rcp_f32 v{sp}, v{sp}')
    a(f'v_mov_b32 v{sn}, v{sp}')
    a(f'v_permlane32_swap_b32 v{sp}, v{sn}')
    for i in range(4):
        a(f'v_pk_mul_f32 v[{EP+2*i}:{EP+2*i+1}], v[{EP+2*i}:{EP+2*i+1}], v[{sp}:{sp+1}] op_sel:[0,0] op_sel_hi:[1,0]')
        a(f'v_pk_mul_f32 v[{EN+2*i}:{EN+2*i+1}], v[{EN+2*i}:{EN+2*i+1}], v[{sn}:{sn+1}] op_sel:[0,0] op_sel_hi:[1,0]')
    for i in range(4):
        a(f'v_cvt_pk_bf16_f32 v{outp+i}, v{EP+2*i}, v{EP+2*i+1}')
        a(f'v_cvt_pk_bf16_f32 v{outn+i}, v{EN+2*i}, v{EN+2*i+1}')


def p1_body(a, cfg):
    SC = cfg['sc']
    ACCQ, ACCK, ACCV = 16, 32, 48
    WF = 64
    XF = 128
    VSUM, VSQ, CSQ, CSK, CSV, ONES = 8, 9, 10, 11, 12, 13
    a(f's_cmp_eq_u32 {S_LAYER}, 0')
    a(f's_add_u32 s45, s34, {WS_XB}')
    a('s_addc_u32 s46, s35, 0')
    a(f's_cmp_eq_u32 {S_LAYER}, 0')
    a('s_cselect_b32 s4, s16, s45')
    a('s_cselect_b32 s5, s17, s46')
    a('s_mov_b32 s6, 0x200000')
    a('s_mov_b32 s7, 0x20000')
    a('s_cselect_b32 s49, 32, 1024')
    a('v_and_b32 v14, 31, v1')
    a('v_lshrrev_b32 v15, 5, v1')
    a(f's_lshl_b32 s45, {S_RB}, 2')
    a(f's_add_u32 s45, s45, {S_WAVE}')
    a('s_lshl_b32 s46, s45, 15')
    a('v_lshlrev_b32 v2, 10, v14')
    a('v_lshl_add_u32 v2, v15, 4, v2')
    a('v_lshlrev_b32 v3, 4, v1')
    a(f's_cmp_eq_u32 {S_LAYER}, 0')
    a('s_cselect_b64 s[50:51], -1, 0')
    a('v_cndmask_b32 v2, v3, v2, s[50:51]')
    a('v_add_u32 v2, s46, v2')
    srd(a, SRD_O, 20, 16384)
    a('v_lshlrev_b32 v3, 4, v1')
    a(f's_lshl_b32 s46, {S_CB}, 10')
    a(f's_mov_b32 m0, {P1_WPHI}')
    a(f's_cmp_eq_u32 {S_WAVE}, 0')
    a('s_cbranch_scc0 L_p1_nowphi')
    a(f'buffer_load_dwordx4 v3, {SRD_O}, s46 offen lds')
    a.label('L_p1_nowphi')
    for i in range(4):
        a(f'v_mov_b32 v{16+i}, 0')
    a('v_lshlrev_b32 v3, 4, v0')
    a(f'ds_write_b128 v3, v[16:19] offset:{P1_KVR}')
    a('v_and_b32 v3, 0x3ff, v3')
    a(f'ds_write_b128 v3, v[16:19] offset:{P1_KVR+4096}')
    a('s_mov_b32 s46, 0')
    for c in range(32):
        a(f'buffer_load_dwordx4 {vr(XF+4*c,4)}, v2, {SRD_A}, s46 offen')
        if c < 31:
            a('s_add_u32 s46, s46, s49')
    a('v_bfe_u32 v3, v1, 4, 1')
    a('v_bfe_u32 v4, v1, 2, 2')
    a('v_and_b32 v5, 3, v1')
    a('v_lshlrev_b32 v5, 3, v5')
    a('v_lshl_add_u32 v5, v3, 5, v5')
    a(f's_cmp_eq_u32 {S_LAYER}, 0')
    a('s_cselect_b32 s46, 3, 2')
    a('v_lshlrev_b32 v6, s46, v15')
    a('v_add_u32 v6, v6, v4')
    a('v_mul_u32_u24 v6, 192, v6')
    a('v_add_u32 v6, v6, v5')
    a(f'v_add_u32 v6, {WB}, v6')
    a('s_cselect_b32 s46, 0, 1')
    a('s_lshl_b32 s46, 768, s46')
    a('v_add_u32 v7, s46, v6')
    for r in (VSUM, VSQ, CSQ, CSK, CSV):
        a(f'v_mov_b32 v{r}, 0')
    a(f'v_mov_b32 v{ONES}, 0x3f803f80')

    def reads(step_in_stage, buf):
        b = WF + 12 * buf
        off = step_in_stage * 3072
        for part in range(3):
            a(f'ds_read_b64_tr_b16 v[{b+4*part}:{b+4*part+1}], v6 offset:{off+64*part}')
            a(f'ds_read_b64_tr_b16 v[{b+4*part+2}:{b+4*part+3}], v7 offset:{off+64*part}')

    for t in range(8):
        a(f's_waitcnt vmcnt({4*(7-t)})')
        if t == 0:
            a('s_waitcnt lgkmcnt(0)')
            a('s_barrier')
        reads(0, 0)
        reads(1, 1)
        for c in range(4 * t, 4 * t + 4):
            for j in range(4):
                a(f'v_dot2c_f32_bf16 v{VSUM}, v{XF+4*c+j}, v{ONES}')
                a(f'v_dot2c_f32_bf16 v{VSQ}, v{XF+4*c+j}, v{XF+4*c+j}')
        for st in range(4):
            c = 4 * t + st
            b = WF + 12 * st
            if st == 0:
                a('s_waitcnt lgkmcnt(6)'); reads(2, 2)
            elif st == 1:
                a('s_waitcnt lgkmcnt(6)'); reads(3, 3)
            elif st == 2:
                a('s_waitcnt lgkmcnt(6)')
            else:
                a('s_waitcnt lgkmcnt(0)')
            x = vr(XF + 4 * c, 4)
            first = (c == 0)
            MF32(a, vr(ACCQ, 16), vr(b, 4), x, '0' if first else vr(ACCQ, 16))
            MF32(a, vr(ACCK, 16), vr(b + 4, 4), x, '0' if first else vr(ACCK, 16))
            MF32(a, vr(ACCV, 16), x, vr(b + 8, 4), '0' if first else vr(ACCV, 16))
            a(f's_cmp_eq_u32 {S_WAVE}, {st}')
            a(f's_cbranch_scc0 L_p1_nocs_{c}')
            for part, cs in enumerate((CSQ, CSK, CSV)):
                for j in range(4):
                    a(f'v_dot2c_f32_bf16 v{cs}, v{b+4*part+j}, v{ONES}')
            a.label(f'L_p1_nocs_{c}')
        if t < 7:
            a('v_add_u32 v6, 12288, v6')
            a('v_add_u32 v7, 12288, v7')

    a('v_lshlrev_b32 v3, 2, v14')
    a(f'ds_add_f32 v3, v{CSQ} offset:{P1_CS}')
    a(f'ds_add_f32 v3, v{CSK} offset:{P1_CS+128}')
    a(f'ds_add_f32 v3, v{CSV} offset:{P1_CS+256}')
    MEAN, RSTD, NMEAN, CSC = 112, 114, 116, 118
    allreduce32_pair(a, VSUM, VSQ, 14 + 100, 'v_add_f32')
    a(f'v_mul_f32 v{MEAN}, 0x3b000000, v{VSUM}')
    a(f'v_mul_f32 v{RSTD}, 0x3b000000, v{RSTD}')
    a(f'v_fma_f32 v{RSTD}, -v{MEAN}, v{MEAN}, v{RSTD}')
    a(f'v_max_f32 v{RSTD}, 0, v{RSTD}')
    a(f'v_add_f32 v{RSTD}, 0x3727c5ac, v{RSTD}')
    a(f'v_rsq_f32 v{RSTD}, v{RSTD}')
    a(f'v_sub_f32 v{NMEAN}, 0, v{MEAN}')
    a(f'v_mul_f32 v{CSC}, {LOG2E:#x}, v{RSTD}')
    a(f's_lshl_b32 s46, {S_WAVE}, 8')
    a('v_lshlrev_b32 v4, 2, v14')
    a('v_add_u32 v4, s46, v4')
    a(f'ds_write_b32 v4, v{NMEAN} offset:{P1_ST}')
    a(f'ds_write_b32 v4, v{RSTD} offset:{P1_ST+128}')
    a('s_waitcnt lgkmcnt(0)')
    a('s_barrier')
    CQ, CK = 64, 80
    SM, SR = 96, 128
    CV = 120
    a('v_lshlrev_b32 v4, 4, v15')
    for q in range(4):
        a(f'ds_read_b128 {vr(CQ+4*q,4)}, v4 offset:{P1_CS+32*q}')
    for q in range(4):
        a(f'ds_read_b128 {vr(CK+4*q,4)}, v4 offset:{P1_CS+128+32*q}')
    a(f'ds_read_b32 v{CV}, v3 offset:{P1_CS+256}')
    a('v_add_u32 v5, s46, v4')
    for q in range(4):
        a(f'ds_read_b128 {vr(SM+4*q,4)}, v5 offset:{P1_ST+32*q}')
    for q in range(4):
        a(f'ds_read_b128 {vr(SR+4*q,4)}, v5 offset:{P1_ST+128+32*q}')
    WA, A1, A2 = 144, 148, 152
    a('v_bfe_u32 v5, v1, 4, 1')
    a('v_bfe_u32 v6, v1, 2, 2')
    a('v_lshl_add_u32 v6, v15, 2, v6')
    a('v_lshlrev_b32 v6, 5, v6')
    a('v_lshl_add_u32 v6, v5, 9, v6')
    a('v_and_b32 v7, 3, v1')
    a('v_lshl_add_u32 v6, v7, 3, v6')
    a(f'ds_read_b64_tr_b16 v[{WA}:{WA+1}], v6 offset:{P1_WPHI}')
    a(f'ds_read_b64_tr_b16 v[{WA+2}:{WA+3}], v6 offset:{P1_WPHI+256}')
    a('v_cmp_eq_u32 s[50:51], 0, v5')
    ID0, ID1 = 156, 160
    a('v_lshlrev_b32 v6, 3, v15')
    a('v_sub_u32 v6, v14, v6')
    for cc, ID in ((0, ID0), (1, ID1)):
        a(f'v_subrev_u32 v7, {16*cc}, v6')
        a('v_and_b32 v8, 1, v7')
        a('v_lshlrev_b32 v8, 4, v8')
        a('v_mov_b32 v9, 0x3f80')
        a('v_lshlrev_b32 v8, v8, v9')
        a('v_lshrrev_b32 v7, 1, v7')
        for jp in range(4):
            a(f'v_cmp_eq_u32 vcc, {jp}, v7')
            a(f'v_cndmask_b32 v{ID+jp}, 0, v8, vcc')
    a('s_waitcnt lgkmcnt(0)')
    for j in range(4):
        a(f'v_cndmask_b32 v{A1+j}, 0, v{WA+j}, s[50:51]')
        a(f'v_cndmask_b32 v{A2+j}, v{WA+j}, 0, s[50:51]')
    QP, KP, VP = 164, 172, 180
    for acc, C in ((ACCQ, CQ), (ACCK, CK)):
        for i in range(8):
            a(f'v_pk_fma_f32 v[{acc+2*i}:{acc+2*i+1}], v[{C+2*i}:{C+2*i+1}], v[{NMEAN}:{NMEAN+1}], v[{acc+2*i}:{acc+2*i+1}] op_sel:[0,0,0] op_sel_hi:[1,0,1]')
    for acc, Pk in ((ACCQ, QP), (ACCK, KP)):
        for i in range(8):
            a(f'v_cvt_pk_bf16_f32 v{Pk+i}, v{acc+2*i}, v{acc+2*i+1}')
    PQ, PK = 64, 80
    MF32(a, vr(PK, 16), vr(A1, 4), vr(KP, 4), '0')
    MF32(a, vr(PQ, 16), vr(A1, 4), vr(QP, 4), '0')
    MF32(a, vr(PK, 16), vr(A2, 4), vr(KP + 4, 4), vr(PK, 16))
    MF32(a, vr(PQ, 16), vr(A2, 4), vr(QP + 4, 4), vr(PQ, 16))
    for i in range(8):
        a(f'v_pk_fma_f32 v[{ACCV+2*i}:{ACCV+2*i+1}], v[{SM+2*i}:{SM+2*i+1}], v[{CV}:{CV+1}], v[{ACCV+2*i}:{ACCV+2*i+1}] op_sel:[0,0,0] op_sel_hi:[1,0,1]')
    for i in range(8):
        a(f'v_pk_mul_f32 v[{ACCV+2*i}:{ACCV+2*i+1}], v[{ACCV+2*i}:{ACCV+2*i+1}], v[{SR+2*i}:{SR+2*i+1}]')
    for i in range(8):
        a(f'v_cvt_pk_bf16_f32 v{VP+i}, v{ACCV+2*i}, v{ACCV+2*i+1}')
    FK = 188
    FQ = 204
    T = 220
    for hh in range(2):
        softmax16(a, PK + 8 * hh, CSC, FK + 8 * hh, FK + 8 * hh + 4, T)
    TD = 16
    for hh in range(2):
        d = TD + 16 * hh
        MF32(a, vr(d, 16), vr(FK + 8 * hh, 4), vr(ID0, 4), '0')
        MF32(a, vr(d, 16), vr(FK + 8 * hh + 4, 4), vr(ID1, 4), vr(d, 16))
    for hh in range(2):
        softmax16(a, PQ + 8 * hh, CSC, FQ + 8 * hh, FQ + 8 * hh + 4, T)
    a(f's_lshl_b32 s46, s45, 16')
    a(f's_lshl_b32 s47, {S_CB}, 12')
    a('s_add_u32 s46, s46, s47')
    a(f's_add_u32 s46, s46, {S_LOFF}')
    a(f's_add_u32 s46, s46, {WS_PHIQ}')
    a('v_lshlrev_b32 v3, 4, v1')
    for i in range(4):
        a(f'buffer_store_dwordx4 {vr(FQ+4*i,4)}, v3, {SRD_WS}, s46 offen offset:{1024*i} {SC}')
    TB = 128
    VA = 144
    for hh in range(2):
        d = TD + 16 * hh
        for i in range(8):
            a(f'v_cvt_pk_bf16_f32 v{TB+8*hh+i}, v{d+2*i}, v{d+2*i+1}')
    for i in range(8):
        a(f'v_cndmask_b32 v{VA+i}, v{ONES}, v{VP+i}, s[50:51]')
        a(f'v_cndmask_b32 v{VA+8+i}, v{VP+i}, v{ONES}, s[50:51]')
    KVD = 64
    for hh in range(2):
        d = KVD + 16 * hh
        MF32(a, vr(d, 16), vr(VA + 8 * hh, 4), vr(TB + 8 * hh, 4), '0')
        MF32(a, vr(d, 16), vr(VA + 8 * hh + 4, 4), vr(TB + 8 * hh + 4, 4), vr(d, 16))
    a('v_lshlrev_b32 v4, 9, v15')
    a('v_lshl_add_u32 v4, v14, 2, v4')
    a('v_lshlrev_b32 v5, 7, v15')
    a('v_lshl_add_u32 v5, v14, 2, v5')
    for hh in range(2):
        d = KVD + 16 * hh + 8 * hh
        for r in range(8):
            row = (r & 3) + 8 * (r >> 2)
            a(f'ds_add_f32 v4, v{d+r} offset:{P1_KVR + hh*KV_HEAD + row*128}')
        z = KVD + 16 * hh + (8 if hh == 0 else 0)
        a(f'ds_add_f32 v5, v{z} offset:{P1_KVR + hh*KV_HEAD + 2048}')
    a('s_waitcnt lgkmcnt(0)')
    a('s_barrier')
    a('v_lshlrev_b32 v4, 2, v0')
    for i in range(4):
        a(f'ds_read_b32 v{16+i}, v4 offset:{P1_KVR+1024*i}')
    a(f'ds_read_b32 v20, v4 offset:{P1_KVR+4096}')
    a(f's_mul_i32 s46, {S_LAYER}, {KV_LAYER}')
    a(f's_mul_i32 s47, {S_CB}, {2*KV_HEAD}')
    a('s_add_u32 s46, s46, s47')
    a(f's_add_u32 s46, s46, {WS_KV}')
    a('s_waitcnt lgkmcnt(0)')
    for i in range(4):
        a(f'buffer_atomic_add_f32 v{16+i}, v4, {SRD_WS}, s46 offen offset:{1024*i}')
    a(f's_cmp_lt_u32 {S_WAVE}, 2')
    a('s_cbranch_scc0 L_p1_noat')
    a('s_add_u32 s46, s46, 4096')
    a(f'buffer_atomic_add_f32 v20, v4, {SRD_WS}, s46 offen')
    a.label('L_p1_noat')


def reduce4(a, ACC, OUT, region_of_wave_bytes, tag, base=0):
    a('v_lshlrev_b32 v3, 4, v1')
    if base:
        a(f'v_add_u32 v3, {base}, v3')
    a(f's_mul_i32 s46, {S_WAVE}, {region_of_wave_bytes}')
    a('v_add_u32 v4, s46, v3')
    for w in range(4):
        if w < 3:
            a(f's_cmp_eq_u32 {S_WAVE}, {w}')
            a(f's_cbranch_scc0 L_red{tag}_n{w}')
        for q in range(4):
            if q == w:
                continue
            slot = q - (1 if q > w else 0)
            for rg in range(4):
                a(f'ds_write_b128 v4, {vr(ACC+16*q+4*rg,4)} offset:{slot*4096+rg*1024}')
        for i in range(16):
            a(f'v_mov_b32 v{OUT+i}, v{ACC+16*w+i}')
        if w < 3:
            a(f's_branch L_red{tag}_done')
            a.label(f'L_red{tag}_n{w}')
    a.label(f'L_red{tag}_done')
    a('s_waitcnt lgkmcnt(0)')
    a('s_barrier')
    for k in range(1, 4):
        a(f's_add_u32 s46, {S_WAVE}, {k}')
        a('s_and_b32 s46, s46, 3')
        a(f's_cmp_gt_u32 {S_WAVE}, s46')
        a(f's_subb_u32 s47, {S_WAVE}, 0')
        a(f's_mul_i32 s46, s46, {region_of_wave_bytes}')
        a('s_lshl_b32 s47, s47, 12')
        a('s_add_u32 s46, s46, s47')
        a('v_add_u32 v4, s46, v3')
        for rg in range(4):
            a(f'ds_read_b128 {vr(OUT+16*k+4*rg,4)}, v4 offset:{rg*1024}')
    for k in range(1, 4):
        a(f's_waitcnt lgkmcnt({4*(3-k)})')
        for i in range(8):
            a(f'v_pk_add_f32 v[{OUT+2*i}:{OUT+2*i+1}], v[{OUT+2*i}:{OUT+2*i+1}], v[{OUT+16*k+2*i}:{OUT+16*k+2*i+1}]')


def add_packed_residual(a, OUT, R, T):
    for i in range(8):
        a(f'v_lshlrev_b32 v{T}, 16, v{R+i}')
        a(f'v_and_b32 v{T+1}, 0xffff0000, v{R+i}')
        a(f'v_pk_add_f32 v[{OUT+2*i}:{OUT+2*i+1}], v[{OUT+2*i}:{OUT+2*i+1}], v[{T}:{T+1}]')


P2_LDS = WB + 131072


def p2_wdma(a, tag):
    a(f's_cmp_eq_u32 {S_WAVE}, 0')
    a(f's_cbranch_scc1 L_p2w_skip{tag}')
    a('v_lshrrev_b32 v3, 4, v1')
    a('v_bfe_u32 v4, v1, 2, 2')
    a('v_xor_b32 v4, v4, v3')
    a('v_and_b32 v5, 3, v1')
    a('v_lshlrev_b32 v3, 10, v3')
    a('v_lshl_add_u32 v3, v4, 6, v3')
    a('v_lshl_add_u32 v3, v5, 4, v3')
    a(f's_sub_u32 s48, {S_WAVE}, 1')
    a(f's_lshl_b32 s46, {S_CB}, 8')
    a('s_lshl_b32 s47, s48, 12')
    a('s_add_u32 s46, s46, s47')
    a('s_lshl_b32 s47, s48, 10')
    a(f's_add_u32 s47, s47, {WB}')
    a.label(f'L_p2w_loop{tag}')
    a('s_mov_b32 m0, s47')
    a('s_add_u32 s47, s47, 3072')
    a(f'buffer_load_dwordx4 v3, {SRD_W}, s46 offen lds')
    a('s_add_u32 s46, s46, 12288')
    a('s_add_u32 s48, s48, 3')
    a('s_cmp_lt_u32 s48, 128')
    a(f's_cbranch_scc1 L_p2w_loop{tag}')
    a.label(f'L_p2w_skip{tag}')


def p2_body(a, cfg):
    SC = cfg['sc']
    ACC = 16
    OD = 80
    OP = 112
    KV = 128
    PHI = 0
    WFA = 64
    XR = 120
    a('v_and_b32 v14, 31, v1')
    a('v_lshrrev_b32 v15, 5, v1')
    a('v_min_u32 v2, 16, v14')
    a('v_lshlrev_b32 v2, 7, v2')
    a('v_lshl_add_u32 v2, v15, 5, v2')
    a(f's_mul_i32 s46, {S_LAYER}, {KV_LAYER}')
    a(f's_mul_i32 s47, {S_WAVE}, {8*KV_HEAD}')
    a('s_add_u32 s46, s46, s47')
    a(f's_add_u32 s46, s46, {WS_KV}')
    a('v_lshlrev_b32 v3, 4, v1')
    a(f's_lshl_b32 s47, {S_RB}, 16')
    a(f's_lshl_b32 s48, {S_WAVE}, 14')
    a('s_add_u32 s47, s47, s48')
    a(f's_add_u32 s47, s47, {S_LOFF}')
    a(f's_add_u32 s47, s47, {WS_PHIQ}')
    for hl in range(8):
        for q in range(4):
            a(f'buffer_load_dwordx4 {vr(KV+16*hl+4*q,4)}, v2, {SRD_WS}, s46 offen offset:{(q>>1)*64+(q&1)*16} {SC}')
        for cc in range(2):
            a(f'buffer_load_dwordx4 {ar(PHI+(hl*2+cc)*4,4)}, v3, {SRD_WS}, s47 offen offset:{cc*1024} {SC}')
        if hl < 7:
            a(f's_add_u32 s46, s46, {KV_HEAD}')
            a('s_add_u32 s47, s47, 2048')
    a(f's_cmp_eq_u32 {S_LAYER}, 0')
    a('s_cbranch_scc0 L_p2_res1')
    srd(a, SRD_A, 16, 0x200000)
    a(f's_lshl_b32 s46, {S_RB}, 15')
    a(f's_lshl_b32 s47, {S_CB}, 8')
    a('s_add_u32 s46, s46, s47')
    a(f's_lshl_b32 s47, {S_WAVE}, 6')
    a('s_add_u32 s46, s46, s47')
    a('v_lshlrev_b32 v4, 10, v14')
    a('v_lshl_add_u32 v4, v15, 3, v4')
    for q in range(4):
        a(f'buffer_load_dwordx2 {vr(XR+2*q,2)}, v4, {SRD_A}, s46 offen offset:{16*q}')
    a('s_branch L_p2_resd')
    a.label('L_p2_res1')
    a(f's_lshl_b32 s46, {S_RB}, 15')
    a(f's_lshl_b32 s47, {S_CB}, 13')
    a('s_add_u32 s46, s46, s47')
    a(f's_lshl_b32 s47, {S_WAVE}, 11')
    a('s_add_u32 s46, s46, s47')
    a(f's_add_u32 s46, s46, {WS_XB}')
    a(f'buffer_load_dwordx4 {vr(XR,4)}, v3, {SRD_WS}, s46 offen {SC}')
    a(f'buffer_load_dwordx4 {vr(XR+4,4)}, v3, {SRD_WS}, s46 offen offset:1024 {SC}')
    a('s_nop 0')
    a('s_nop 0')
    a.label('L_p2_resd')
    a('v_bfe_u32 v4, v1, 2, 2')
    a('v_lshl_add_u32 v5, v15, 2, v4')
    a('v_lshlrev_b32 v5, 8, v5')
    a('v_lshl_add_u32 v5, v4, 6, v5')
    a('v_bfe_u32 v6, v1, 4, 1')
    a('v_lshl_add_u32 v5, v6, 5, v5')
    a('v_and_b32 v6, 3, v1')
    a('v_lshl_add_u32 v5, v6, 3, v5')
    a(f's_lshl_b32 s46, {S_WAVE}, 15')
    a(f's_add_u32 s46, s46, {WB}')
    a('v_add_u32 v5, s46, v5')
    for nt in range(4):
        a(f'v_xor_b32 v{6+nt}, {nt*64}, v5')
    a('s_waitcnt vmcnt(50)')
    a('s_barrier')

    def wreads(hl, buf):
        for nt in range(4):
            b = WFA + 16 * buf + 4 * nt
            a(f'ds_read_b64_tr_b16 a[{b}:{b+1}], v{6+nt} offset:{hl*4096}')
            a(f'ds_read_b64_tr_b16 a[{b+2}:{b+3}], v{6+nt} offset:{hl*4096+2048}')

    def head_o(hl):
        buf = hl & 1
        k = KV + 16 * hl
        for cc in range(2):
            for jp in range(4):
                a(f'v_cvt_pk_bf16_f32 v{k+8*cc+jp}, v{k+8*cc+2*jp}, v{k+8*cc+2*jp+1}')
        d = vr(OD + 16 * buf, 16)
        MF32(a, d, vr(k, 4), ar(PHI + hl * 8, 4), '0')
        MF32(a, d, vr(k + 8, 4), ar(PHI + hl * 8 + 4, 4), d)

    def head_norm(hl):
        buf = hl & 1
        d = OD + 16 * buf
        a(f'v_add_f32 v{d+8}, 0x358637bd, v{d+8}')
        a(f'v_rcp_f32 v{d+8}, v{d+8}')
        for i in range(4):
            a(f'v_pk_mul_f32 v[{d+2*i}:{d+2*i+1}], v[{d+2*i}:{d+2*i+1}], v[{d+8}:{d+9}] op_sel:[0,0] op_sel_hi:[1,0]')
        for i in range(4):
            a(f'v_cvt_pk_bf16_f32 v{OP+4*buf+i}, v{d+2*i}, v{d+2*i+1}')

    def head_gemm(hl):
        buf = hl & 1
        for nt in range(4):
            d = vr(ACC + 16 * nt, 16)
            MF32(a, d, ar(WFA + 16 * buf + 4 * nt, 4), vr(OP + 4 * buf, 4), '0' if hl == 0 else d)

    NRES = 2
    a(f's_waitcnt vmcnt({6*7+NRES})')
    head_o(0)
    wreads(0, 0)
    for hl in range(8):
        if hl < 7:
            a(f's_waitcnt vmcnt({6*(7-hl-1)+NRES})')
            head_o(hl + 1)
            wreads(hl + 1, (hl + 1) & 1)
        head_norm(hl)
        a(f's_waitcnt lgkmcnt({8 if hl < 7 else 0})')
        head_gemm(hl)
    a('s_barrier')
    OUT = 128
    a.nop(12)
    reduce4(a, ACC, OUT, 32768, 'p2', WB)
    a('s_waitcnt vmcnt(0)')
    add_packed_residual(a, OUT, XR, 12)
    for i in range(8):
        a(f'v_cvt_pk_bf16_f32 v{16+i}, v{OUT+2*i}, v{OUT+2*i+1}')
    a('v_mov_b32 v24, v16'); a('v_mov_b32 v25, v17'); a('v_mov_b32 v26, v20'); a('v_mov_b32 v27, v21')
    a('v_mov_b32 v28, v18'); a('v_mov_b32 v29, v19'); a('v_mov_b32 v30, v22'); a('v_mov_b32 v31, v23')
    a('v_lshrrev_b32 v4, 4, v14')
    a('v_lshlrev_b32 v4, 14, v4')
    a('v_and_b32 v5, 15, v14')
    a('v_lshl_add_u32 v4, v5, 4, v4')
    a('v_lshl_add_u32 v4, v15, 8, v4')
    a(f's_lshl_b32 s46, {S_RB}, 15')
    a(f's_lshl_b32 s47, {S_CB}, 2')
    a(f's_add_u32 s47, s47, {S_WAVE}')
    a('s_lshl_b32 s47, s47, 10')
    a('s_add_u32 s46, s46, s47')
    a(f's_add_u32 s46, s46, {S_LOFF}')
    a(f's_add_u32 s46, s46, {WS_XA}')
    a(f'buffer_store_dwordx4 v[24:27], v4, {SRD_WS}, s46 offen {SC}')
    a(f'buffer_store_dwordx4 v[28:31], v4, {SRD_WS}, s46 offen offset:512 {SC}')


P3_CS = 0
P3_LDS = WB + 114688


def p3_wdma(a, tag):
    mul, sh = magic_div(14, 191)
    a(f's_cmp_eq_u32 {S_WAVE}, 0')
    a(f's_cbranch_scc1 L_p3w_skip{tag}')
    a(f's_sub_u32 s48, {S_WAVE}, 1')
    a('s_lshl_b32 s46, s48, 6')
    a('v_add_u32 v3, s46, v1')
    a(f'v_mul_u32_u24 v4, {mul}, v3')
    a(f'v_lshrrev_b32 v4, {sh}, v4')
    a('v_mul_u32_u24 v5, 14, v4')
    a('v_sub_u32 v5, v3, v5')
    a('v_mul_u32_u24 v3, 3584, v4')
    a('v_lshl_add_u32 v3, v5, 4, v3')
    a(f's_mul_i32 s46, {S_CB}, 224')
    a('s_lshl_b32 s47, s48, 10')
    a(f's_add_u32 s47, s47, {WB}')
    a.label(f'L_p3w_loop{tag}')
    a('s_mov_b32 m0, s47')
    a('s_add_u32 s47, s47, 3072')
    a(f'buffer_load_dwordx4 v3, {SRD_W}, s46 offen lds')
    a('v_add_u32 v5, 10, v5')
    a(f'v_add_u32 v3, {13*3584+160}, v3')
    a('v_cmp_le_u32 vcc, 14, v5')
    a('v_subrev_u32 v4, 14, v5')
    a('v_cndmask_b32 v5, v5, v4, vcc')
    a(f'v_add_u32 v4, {3584-224}, v3')
    a('v_cndmask_b32 v3, v3, v4, vcc')
    a('s_add_u32 s48, s48, 3')
    a('s_cmp_lt_u32 s48, 112')
    a(f's_cbranch_scc1 L_p3w_loop{tag}')
    a.label(f'L_p3w_skip{tag}')


def p3_body(a, cfg):
    SC = cfg['sc']
    ACC = 16
    WF = 72
    XF = 128
    SUM = [8, 9]; SQ = [10, 11]
    ONES = 13
    CS0 = None
    a('v_lshlrev_b32 v2, 4, v1')
    a(f's_lshl_b32 s46, {S_RB}, 3')
    a(f's_lshl_b32 s47, {S_WAVE}, 1')
    a('s_add_u32 s46, s46, s47')
    a('s_lshl_b32 s46, s46, 14')
    a(f's_add_u32 s46, s46, {S_LOFF}')
    a(f's_add_u32 s46, s46, {WS_XA}')
    a('s_add_u32 s47, s46, 16384')
    for c in range(16):
        a(f'buffer_load_dwordx4 {vr(XF+8*c,4)}, v2, {SRD_WS}, s46 offen offset:{(c&3)*1024} {SC}')
        a(f'buffer_load_dwordx4 {vr(XF+8*c+4,4)}, v2, {SRD_WS}, s47 offen offset:{(c&3)*1024} {SC}')
        if (c & 3) == 3 and c < 15:
            a('s_add_u32 s46, s46, 4096')
            a('s_add_u32 s47, s47, 4096')
    a('v_mov_b32 v3, 0')
    a('v_lshlrev_b32 v4, 2, v1')
    a(f'ds_write_b32 v4, v3 offset:{P3_CS}')
    a(f'ds_write_b32 v4, v3 offset:{P3_CS+256}')
    a('v_lshrrev_b32 v4, 4, v1')
    a('v_bfe_u32 v5, v1, 2, 2')
    a('v_lshl_add_u32 v5, v4, 2, v5')
    a('v_mul_u32_u24 v6, 224, v5')
    a('v_and_b32 v5, 3, v1')
    a('v_lshl_add_u32 v6, v5, 3, v6')
    a(f'v_add_u32 v6, {WB}, v6')
    for r in SUM + SQ:
        a(f'v_mov_b32 v{r}, 0')
    a(f'v_mov_b32 v{ONES}, 0x3f803f80')
    CS = [2, 3, 4, 5, 7, 12, 14]
    a('s_waitcnt vmcnt(32)')
    a('s_waitcnt lgkmcnt(0)')
    a('s_barrier')
    for r in CS:
        a(f'v_mov_b32 v{r}, 0')

    def reads(c_in_stage, buf, t0, t1):
        for t in range(t0, t1):
            b = WF + 28 * buf + 4 * t
            off = c_in_stage * 32 * 224 + t * 32
            a(f'ds_read_b64_tr_b16 v[{b}:{b+1}], v6 offset:{off}')
            a(f'ds_read_b64_tr_b16 v[{b+2}:{b+3}], v6 offset:{off+16*224}')

    for c in range(16):
        stg, cs_ = c >> 2, c & 3
        buf = c & 1
        if c == 0:
            reads(0, 0, 0, 7)
        a(f's_waitcnt vmcnt({2*(15-c)})')
        for u in range(2):
            for j in range(4):
                x = XF + 8 * c + 4 * u + j
                a(f'v_dot2c_f32_bf16 v{SUM[u]}, v{x}, v{ONES}')
                a(f'v_dot2c_f32_bf16 v{SQ[u]}, v{x}, v{x}')
        a('s_waitcnt lgkmcnt(0)')
        if c < 15:
            if cs_ == 3:
                a('v_add_u32 v6, 28672, v6')
            reads((c + 1) & 3, buf ^ 1, 0, 7)
        for t in range(7):
            b = WF + 28 * buf + 4 * t
            for u in range(2):
                d = vr(ACC + (t * 2 + u) * 4, 4)
                MF16(a, d, vr(b, 4), vr(XF + 8 * c + 4 * u, 4), '0' if c == 0 else d)
        a(f's_cmp_eq_u32 {S_WAVE}, {cs_}')
        a(f's_cbranch_scc0 L_p3_nocs_{c}')
        for t in range(7):
            b = WF + 28 * buf + 4 * t
            for j in range(4):
                a(f'v_dot2c_f32_bf16 v{CS[t]}, v{b+j}, v{ONES}')
        a.label(f'L_p3_nocs_{c}')
    a('v_and_b32 v15, 15, v1')
    a('v_lshlrev_b32 v15, 2, v15')
    for t in range(7):
        a(f'ds_add_f32 v15, v{CS[t]} offset:{P3_CS+64*t}')
    T = 128
    k = 0
    for r in SUM + SQ:
        a(f'v_mov_b32 v{T+k}, v{r}')
        k += 1
    k = 0
    for r in SUM + SQ:
        a(f'v_permlane16_swap_b32 v{r}, v{T+k}')
        k += 1
    k = 0
    for r in SUM + SQ:
        a(f'v_add_f32 v{r}, v{r}, v{T+k}')
        k += 1
    k = 0
    for r in SUM + SQ:
        a(f'v_mov_b32 v{T+k}, v{r}')
        k += 1
    k = 0
    for r in SUM + SQ:
        a(f'v_permlane32_swap_b32 v{r}, v{T+k}')
        k += 1
    k = 0
    for r in SUM + SQ:
        a(f'v_add_f32 v{r}, v{r}, v{T+k}')
        k += 1
    NM = [132, 134]; RS = [136, 138]; NL = [140, 142]
    for u in range(2):
        a(f'v_mul_f32 v{NM[u]}, 0x3b000000, v{SUM[u]}')
        a(f'v_mul_f32 v{RS[u]}, 0x3b000000, v{SQ[u]}')
        a(f'v_fma_f32 v{RS[u]}, -v{NM[u]}, v{NM[u]}, v{RS[u]}')
        a(f'v_max_f32 v{RS[u]}, 0, v{RS[u]}')
        a(f'v_add_f32 v{RS[u]}, 0x3727c5ac, v{RS[u]}')
        a(f'v_rsq_f32 v{RS[u]}, v{RS[u]}')
        a(f'v_sub_f32 v{NM[u]}, 0, v{NM[u]}')
        a(f'v_mul_f32 v{NL[u]}, {(LOG2E | 0x80000000):#x}, v{RS[u]}')
    a('s_waitcnt lgkmcnt(0)')
    a('s_barrier')
    CSR = 144
    a('v_lshrrev_b32 v4, 4, v1')
    a('v_lshlrev_b32 v4, 4, v4')
    for t in range(7):
        a(f'ds_read_b128 {vr(CSR+4*t,4)}, v4 offset:{P3_CS+64*t}')
    a('v_and_b32 v5, 15, v1')
    a('v_lshrrev_b32 v7, 5, v1')
    a('v_lshl_add_u32 v5, v7, 4, v5')
    a('v_bfe_u32 v7, v1, 4, 1')
    a('v_lshl_add_u32 v5, v7, 5, v5')
    a('v_lshlrev_b32 v5, 4, v5')
    a(f's_lshl_b32 s46, {S_RB}, 2')
    a(f's_add_u32 s46, s46, {S_WAVE}')
    a('s_mul_i32 s46, s46, 112')
    a(f's_mul_i32 s47, {S_CB}, 7')
    a('s_add_u32 s46, s46, s47')
    a('s_lshl_b32 s46, s46, 10')
    a(f's_add_u32 s46, s46, {S_LOFF}')
    a(f's_add_u32 s46, s46, {WS_H}')
    a('s_waitcnt lgkmcnt(0)')
    E = 176
    ONEF = 184
    a(f'v_mov_b32 v{ONEF}, 1.0')
    PKD = 192
    for t in range(7):
        for u in range(2):
            d = ACC + (t * 2 + u) * 4
            for i in range(2):
                pr = f'v[{d+2*i}:{d+2*i+1}]'
                e = E + 4 * u + 2 * i
                er = f'v[{e}:{e+1}]'
                a(f'v_pk_fma_f32 {pr}, v[{CSR+4*t+2*i}:{CSR+4*t+2*i+1}], v[{NM[u]}:{NM[u]+1}], {pr} op_sel:[0,0,0] op_sel_hi:[1,0,1]')
                a(f'v_pk_mul_f32 {er}, {pr}, v[{NL[u]}:{NL[u]+1}] op_sel:[0,0] op_sel_hi:[1,0]')
                a(f'v_pk_mul_f32 {pr}, {pr}, v[{RS[u]}:{RS[u]+1}] op_sel:[0,0] op_sel_hi:[1,0]')
        for i in range(8):
            a(f'v_exp_f32 v{E+i}, v{E+i}')
        for i in range(4):
            a(f'v_pk_add_f32 v[{E+2*i}:{E+2*i+1}], v[{E+2*i}:{E+2*i+1}], v[{ONEF}:{ONEF+1}] op_sel:[0,0] op_sel_hi:[1,0]')
        for i in range(8):
            a(f'v_rcp_f32 v{E+i}, v{E+i}')
        for u in range(2):
            d = ACC + (t * 2 + u) * 4
            for i in range(2):
                a(f'v_pk_mul_f32 v[{d+2*i}:{d+2*i+1}], v[{d+2*i}:{d+2*i+1}], v[{E+4*u+2*i}:{E+4*u+2*i+1}]')
            for i in range(2):
                a(f'v_cvt_pk_bf16_f32 v{PKD+4*t+2*u+i}, v{d+2*i}, v{d+2*i+1}')
        p = PKD + 4 * t
        a(f'v_permlane32_swap_b32 v{p}, v{p+2}')
        a(f'v_permlane32_swap_b32 v{p+1}, v{p+3}')
        off = t * 1024
        if off >= 4096:
            a(f'buffer_store_dwordx4 {vr(p,4)}, v5, {SRD_WS}, s47 offen offset:{off-4096} {SC}')
        else:
            a(f'buffer_store_dwordx4 {vr(p,4)}, v5, {SRD_WS}, s46 offen offset:{off} {SC}')
        if t == 0:
            a('s_add_u32 s47, s46, 4096')


P4_LDS = 163840
P4_PRE = 20


def p4_wdma(a, tag):
    a(f's_cmp_eq_u32 {S_WAVE}, 0')
    a(f's_cbranch_scc1 L_p4w_skip{tag}')
    a('v_lshrrev_b32 v3, 3, v1')
    a('v_bfe_u32 v4, v1, 2, 1')
    a('v_bfe_u32 v5, v1, 4, 1')
    a('v_xor_b32 v4, v4, v5')
    a('v_and_b32 v5, 3, v1')
    a('v_lshlrev_b32 v3, 10, v3')
    a('v_lshl_add_u32 v3, v4, 6, v3')
    a('v_lshl_add_u32 v3, v5, 4, v3')
    for q in range(4):
        a(f's_sub_u32 s48, {S_WAVE}, 1')
        a(f's_lshl_b32 s46, {S_CB}, 7')
        a('s_lshl_b32 s47, s48, 13')
        a('s_add_u32 s46, s46, s47')
        a(f's_add_u32 s46, s46, {448*q*1024}')
        a('s_lshl_b32 s47, s48, 10')
        a(f's_add_u32 s47, s47, {q*40960}')
        a.label(f'L_p4w_loop{tag}_{q}')
        a('s_mov_b32 m0, s47')
        a('s_add_u32 s47, s47, 3072')
        a(f'buffer_load_dwordx4 v3, {SRD_W}, s46 offen lds')
        a('s_add_u32 s46, s46, 24576')
        a('s_add_u32 s48, s48, 3')
        a(f's_cmp_lt_u32 s48, {2*P4_PRE}')
        a(f's_cbranch_scc1 L_p4w_loop{tag}_{q}')
    a.label(f'L_p4w_skip{tag}')


def p4_body(a, cfg):
    SC = cfg['sc']
    ACC = 16
    WF = 80
    HF = 0
    XR = 112
    a('v_and_b32 v14, 31, v1')
    a('v_lshrrev_b32 v15, 5, v1')
    a('v_lshlrev_b32 v2, 4, v1')
    a(f's_lshl_b32 s46, {S_RB}, 1')
    a('s_mul_i32 s46, s46, 112')
    a(f's_mul_i32 s47, {S_WAVE}, 28')
    a('s_add_u32 s46, s46, s47')
    a('s_lshl_b32 s46, s46, 10')
    a(f's_add_u32 s46, s46, {S_LOFF}')
    a(f's_add_u32 s46, s46, {WS_H}')
    a(f's_add_u32 s47, s46, {112*1024}')
    for st in range(28):
        a(f'buffer_load_dwordx4 {ar(HF+st*8,4)}, v2, {SRD_WS}, s46 offen offset:{(st&3)*1024} {SC}')
        a(f'buffer_load_dwordx4 {ar(HF+st*8+4,4)}, v2, {SRD_WS}, s47 offen offset:{(st&3)*1024} {SC}')
        if (st & 3) == 3 and st < 27:
            a('s_add_u32 s46, s46, 4096')
            a('s_add_u32 s47, s47, 4096')
    a('v_lshrrev_b32 v3, 3, v1')
    a('v_bfe_u32 v4, v1, 2, 1')
    a('v_bfe_u32 v5, v1, 4, 1')
    a('v_xor_b32 v4, v4, v5')
    a('v_and_b32 v5, 3, v1')
    a('v_lshlrev_b32 v3, 10, v3')
    a('v_lshl_add_u32 v3, v4, 6, v3')
    a('v_lshl_add_u32 v3, v5, 4, v3')
    a(f's_mul_i32 s49, {S_WAVE}, {448*1024}')
    a(f's_lshl_b32 s47, {S_CB}, 7')
    a('s_add_u32 s49, s49, s47')
    a(f's_add_u32 s49, s49, {16*P4_PRE*1024}')
    a(f's_mul_i32 s50, {S_WAVE}, 40960')
    a('v_bfe_u32 v4, v1, 2, 2')
    a('v_lshl_add_u32 v5, v15, 2, v4')
    a('v_lshlrev_b32 v5, 7, v5')
    a('v_bfe_u32 v4, v1, 3, 1')
    a('v_lshl_add_u32 v5, v4, 6, v5')
    a('v_bfe_u32 v4, v1, 4, 1')
    a('v_lshl_add_u32 v5, v4, 5, v5')
    a('v_and_b32 v4, 3, v1')
    a('v_lshl_add_u32 v5, v4, 3, v5')
    a('v_add_u32 v6, s50, v5')
    a('v_xor_b32 v7, 64, v6')
    a('s_waitcnt vmcnt(56)')
    a('s_barrier')

    def reads(st):
        slot = st % P4_PRE
        b = WF + 8 * (st % 3)
        for nt in range(2):
            a(f'ds_read_b64_tr_b16 v[{b+4*nt}:{b+4*nt+1}], v{6+nt} offset:{slot*2048}')
            a(f'ds_read_b64_tr_b16 v[{b+4*nt+2}:{b+4*nt+3}], v{6+nt} offset:{slot*2048+1024}')

    NLATE = 28 - P4_PRE
    reads(0)
    reads(1)
    for st in range(28):
        if st < P4_PRE:
            a(f's_waitcnt vmcnt({2*(27-st) + 2*min(st, NLATE)})')
        if st + 2 < 28:
            if st + 2 >= P4_PRE:
                a(f's_waitcnt vmcnt({2*(NLATE-1-(st+2-P4_PRE))})')
            reads(st + 2)
            a('s_waitcnt lgkmcnt(8)')
        elif st + 1 < 28:
            a('s_waitcnt lgkmcnt(4)')
        else:
            a('s_waitcnt lgkmcnt(0)')
        b = WF + 8 * (st % 3)
        for nt in range(2):
            for sb in range(2):
                d = vr(ACC + (nt * 2 + sb) * 16, 16)
                MF32(a, d, vr(b + 4 * nt, 4), ar(HF + st * 8 + 4 * sb, 4), '0' if st == 0 else d)
        if st < NLATE:
            for k in range(2):
                a(f's_add_u32 m0, s50, {st*2048 + k*1024}')
                a(f'buffer_load_dwordx4 v3, {SRD_W}, s49 offen lds')
                a('s_add_u32 s49, s49, 8192')
    a('v_lshrrev_b32 v4, 4, v14')
    a('v_lshlrev_b32 v4, 14, v4')
    a('v_and_b32 v5, 15, v14')
    a('v_lshl_add_u32 v4, v5, 4, v4')
    a('v_lshl_add_u32 v4, v15, 8, v4')
    a(f's_and_b32 s47, {S_WAVE}, 1')
    a(f's_lshl_b32 s46, {S_RB}, 1')
    a('s_add_u32 s51, s46, s47')
    a('s_lshl_b32 s46, s51, 15')
    a(f's_lshr_b32 s47, {S_WAVE}, 1')
    a(f's_lshl_b32 s48, {S_CB}, 1')
    a('s_add_u32 s52, s48, s47')
    a('s_lshl_b32 s47, s52, 10')
    a('s_add_u32 s46, s46, s47')
    a(f's_add_u32 s46, s46, {S_LOFF}')
    a(f's_add_u32 s46, s46, {WS_XA}')
    a(f'buffer_load_dwordx4 v[120:123], v4, {SRD_WS}, s46 offen {SC}')
    a(f'buffer_load_dwordx4 v[124:127], v4, {SRD_WS}, s46 offen offset:512 {SC}')
    OUT = 128
    a.nop(12)
    reduce4(a, ACC, OUT, 40960, 'p4')
    a('s_waitcnt vmcnt(0)')
    for i, r in enumerate((120, 121, 124, 125, 122, 123, 126, 127)):
        a(f'v_mov_b32 v{XR+i}, v{r}')
    add_packed_residual(a, OUT, XR, 12)
    for i in range(8):
        a(f'v_cvt_pk_bf16_f32 v{16+i}, v{OUT+2*i}, v{OUT+2*i+1}')
    a(f's_cmp_eq_u32 {S_LAYER}, 0')
    a('s_cbranch_scc0 L_p4_out')
    a('v_lshlrev_b32 v4, 4, v1')
    a('s_lshl_b32 s46, s51, 15')
    a('s_lshl_b32 s47, s52, 11')
    a('s_add_u32 s46, s46, s47')
    a(f's_add_u32 s46, s46, {WS_XB}')
    a(f'buffer_store_dwordx4 v[16:19], v4, {SRD_WS}, s46 offen {SC}')
    a(f'buffer_store_dwordx4 v[20:23], v4, {SRD_WS}, s46 offen offset:1024 {SC}')
    a('s_branch L_p4_done')
    a.label('L_p4_out')
    srd(a, SRD_O, 30, 0x200000)
    for qq in range(2):
        b = 16 + 4 * qq
        a(f'v_permlane32_swap_b32 v{b}, v{b+2}')
        a(f'v_permlane32_swap_b32 v{b+1}, v{b+3}')
    a('v_lshlrev_b32 v4, 10, v14')
    a('v_lshl_add_u32 v4, v15, 4, v4')
    a('s_lshl_b32 s46, s51, 15')
    a('s_lshl_b32 s47, s52, 6')
    a('s_add_u32 s46, s46, s47')
    a(f'buffer_store_dwordx4 v[16:19], v4, {SRD_O}, s46 offen')
    a(f'buffer_store_dwordx4 v[20:23], v4, {SRD_O}, s46 offen offset:32')
    a.label('L_p4_done')


def tile_ids(a, phase):
    a('s_and_b32 s45, s2, 7')
    a('s_lshr_b32 s46, s2, 3')
    a('s_lshr_b32 s47, s45, 1')
    a('s_and_b32 s45, s45, 1')
    rbits, cbits = {1: (2, 3), 2: (4, 1), 3: (2, 3), 4: (3, 2)}[phase]
    a(f's_and_b32 s48, s46, {(1<<rbits)-1}')
    a(f's_lshl_b32 s47, s47, {rbits}')
    a(f's_add_u32 {S_RB}, s47, s48')
    a(f's_lshr_b32 s48, s46, {rbits}')
    a(f's_lshl_b32 s45, s45, {cbits}')
    a(f's_add_u32 {S_CB}, s45, s48')


def kernel_desc(name, vgpr=512, sgpr=96, accum=256):
    return f""".p2align 6
.amdhsa_kernel {name}
  .amdhsa_next_free_vgpr {vgpr}
  .amdhsa_next_free_sgpr {sgpr}
  .amdhsa_accum_offset {accum}
  .amdhsa_group_segment_fixed_size 0
  .amdhsa_kernarg_size 80
  .amdhsa_user_sgpr_count 2
  .amdhsa_user_sgpr_kernarg_segment_ptr 1
  .amdhsa_system_sgpr_workgroup_id_x 1
.end_amdhsa_kernel
"""


HEADER = open(os.path.join(os.path.dirname(os.path.abspath(__file__)), 'header.txt')).read()


def gen_multi():
    cfg = {'sc': ''}
    launches = []
    text = []
    descs = []

    def kernel(name, emit, lds):
        a = Asm()
        emit(a)
        body = a.finalize()
        body = body.replace('L_', f'L{name}_')
        text.append(f'.globl {name}\n.p2align 8\n.type {name},@function\n{name}:\n{body}')
        descs.append(kernel_desc(name))
        launches.append(f'; @launch kernel={name} grid=(256,1,1) block=(256,1,1) lds={lds}')

    def zero(a):
        common_prologue(a, 0)
        a('v_mov_b32 v4, 0'); a('v_mov_b32 v5, 0'); a('v_mov_b32 v6, 0'); a('v_mov_b32 v7, 0')
        a('s_mul_i32 s46, s2, 576')
        a(f's_add_u32 s46, s46, {WS_KV}')
        a('v_lshlrev_b32 v2, 4, v0')
        a('v_cmp_gt_u32 vcc, 36, v0')
        a('s_and_saveexec_b64 s[50:51], vcc')
        a('s_cbranch_execz L_exit')
        a(f'buffer_store_dwordx4 v[4:7], v2, {SRD_WS}, s46 offen')
        a.label('L_exit')
        a('s_endpgm')
    kernel('zero_kernel', zero, 0)

    for layer in range(2):
        def k1(a, layer=layer):
            common_prologue(a, layer)
            tile_ids(a, 1)
            srd(a, SRD_W, 18, 512 * 1536 * 2)
            p1_wdma(a, '')
            a('s_waitcnt vmcnt(0)')
            p1_body(a, cfg)
            a.label('L_exit')
            a('s_endpgm')
        kernel(f'p1l{layer}_kernel', k1, P1_LDS)

        def k2(a, layer=layer):
            common_prologue(a, layer)
            tile_ids(a, 2)
            srd(a, SRD_W, 22, 512 * 512 * 2)
            p2_wdma(a, '')
            p2_body(a, cfg)
            a.label('L_exit')
            a('s_endpgm')
        kernel(f'p2l{layer}_kernel', k2, P2_LDS)

        def k3(a, layer=layer):
            common_prologue(a, layer)
            tile_ids(a, 3)
            srd(a, SRD_W, 26, 512 * 1792 * 2)
            p3_wdma(a, '')
            p3_body(a, cfg)
            a.label('L_exit')
            a('s_endpgm')
        kernel(f'p3l{layer}_kernel', k3, P3_LDS)

        def k4(a, layer=layer):
            common_prologue(a, layer)
            tile_ids(a, 4)
            srd(a, SRD_W, 28, 1792 * 512 * 2)
            p4_wdma(a, '')
            p4_body(a, cfg)
            a.label('L_exit')
            a('s_endpgm')
        kernel(f'p4l{layer}_kernel', k4, P4_LDS)

    out = HEADER + '\n'.join(launches) + '\n'
    out += '.amdgcn_target "amdgcn-amd-amdhsa--gfx950"\n.text\n'
    out += '\n'.join(text)
    out += '.section .rodata,"a"\n' + ''.join(descs)
    return out


if __name__ == '__main__':
    mode = sys.argv[1] if len(sys.argv) > 1 else 'multi'
    dst = sys.argv[2] if len(sys.argv) > 2 else f'cdna_kernels/{NAME}.s'
    src = gen_multi()
    open(dst, 'w').write(src)
    print('wrote', dst, len(src), 'bytes')
```

```python
import sys, os
sys.path.insert(0, os.path.dirname(os.path.abspath(__file__)))
from asmlib import Asm, magic_div

NAME = 'interleave_layers__linear_kernel_hedgehog__dense_activation_silu__prompt'

WS_FL = 0x0
WS_KV = 0x10000
KV_HEAD = 2176
KV_LAYER = 32 * KV_HEAD
WS_LAYER = 0x1000000
WS_STB = 0x0
WS_STA = 0x40000
WS_XA = 0x100000
WS_XB = 0x300000
WS_PHIQ = 0x500000
WS_H = 0x900000
WS_SIZE = 0x10000000

LOG2E = 0x3fb8aa3b
SC = 'sc1'
SPIN_MAX = 200000

SRD_W = 's[4:7]'
SRD_O = 's[8:11]'
SRD_WS = 's[12:15]'
S_WAVE = 's36'
S_LAYER = 's37'
S_RB = 's38'
S_CB = 's39'
S_LOFF = 's44'

L_CSQ = 0
L_CS1 = 512
L_WPHI = 1024
L_ST = 2048
L_TMP = 3072
WB = 8192
LDS_TOTAL = 163840

STAMPS = os.environ.get('STAMPS', '')
_stamp_n = [0]


def stamp(a):
    if not STAMPS:
        return
    i = _stamp_n[0]
    _stamp_n[0] += 1
    assert i < 32
    a('s_memtime s[62:63]')
    a('s_waitcnt lgkmcnt(0)')
    a(f's_mov_b32 s{64+i}, s62')


def stamp_flush(a):
    if not STAMPS:
        return
    n = _stamp_n[0]
    wg = int(STAMPS)
    a(f's_cmp_eq_u32 s2, {wg}')
    a('s_cbranch_scc0 L_nostamp')
    a('v_mov_b32 v2, 0')
    for i in range(n):
        a(f's_sub_u32 s62, s{64+i}, s64')
        a(f'v_writelane_b32 v2, s62, {i}')
    a(f's_lshl_b32 s62, {S_WAVE}, 7')
    a('s_add_u32 s62, s62, 0x8000')
    a('v_lshlrev_b32 v3, 2, v1')
    a('v_cmp_gt_u32 vcc, 32, v1')
    a('s_and_saveexec_b64 s[60:61], vcc')
    a(f'buffer_store_dword v2, v3, {SRD_WS}, s62 offen')
    a('s_mov_b64 exec, s[60:61]')
    a.label('L_nostamp')


def srd(a, dst, ptr_lo, nbytes):
    d = int(dst[2:dst.index(':')])
    a(f's_mov_b32 s{d}, s{ptr_lo}')
    a(f's_mov_b32 s{d+1}, s{ptr_lo+1}')
    a(f's_mov_b32 s{d+2}, {nbytes}')
    a(f's_mov_b32 s{d+3}, 0x20000')


def vr(b, n=1):
    return f'v{b}' if n == 1 else f'v[{b}:{b+n-1}]'


def ar(b, n=1):
    return f'a{b}' if n == 1 else f'a[{b}:{b+n-1}]'


def MF32(a, d, A, B, C):
    a(f'v_mfma_f32_32x32x16_bf16 {d}, {A}, {B}, {C}')


def MF16(a, d, A, B, C):
    a(f'v_mfma_f32_16x16x32_bf16 {d}, {A}, {B}, {C}')


def allreduce32_pair(a, x, y, t, op):
    a(f'v_permlane32_swap_b32 v{x}, v{y}')
    a(f'{op} v{x}, v{x}, v{y}')
    a(f'v_mov_b32 v{t}, v{x}')
    a(f'v_permlane32_swap_b32 v{x}, v{t}')


def tile_ids(a, phase):
    a('s_and_b32 s45, s2, 7')
    a('s_lshr_b32 s46, s2, 3')
    a('s_lshr_b32 s47, s45, 1')
    a('s_and_b32 s45, s45, 1')
    rbits, cbits = {1: (2, 3), 2: (4, 1), 3: (2, 3), 4: (3, 2)}[phase]
    a(f's_and_b32 s48, s46, {(1<<rbits)-1}')
    a(f's_lshl_b32 s47, s47, {rbits}')
    a(f's_add_u32 {S_RB}, s47, s48')
    a(f's_lshr_b32 s48, s46, {rbits}')
    a(f's_lshl_b32 s45, s45, {cbits}')
    a(f's_add_u32 {S_CB}, s45, s48')


def signal(a, phase, idx_shift, tag):
    a('s_waitcnt vmcnt(0)')
    a('s_barrier')
    a(f's_cmp_eq_u32 {S_WAVE}, 0')
    a(f's_cbranch_scc0 L_sig_{tag}')
    a(f's_lshl_b32 s45, {S_RB}, {idx_shift}')
    a(f's_add_u32 s45, s45, {S_CB}')
    a('s_lshl_b32 s45, s45, 2')
    a(f's_lshl_b32 s46, {S_LAYER}, 12')
    a('s_add_u32 s45, s45, s46')
    a(f's_add_u32 s45, s45, {WS_FL + (phase-1)*1024}')
    a('v_mov_b32 v2, 1')
    a('v_mov_b32 v3, 0')
    a('s_mov_b64 s[50:51], exec')
    a('s_mov_b64 exec, 1')
    a(f'buffer_store_dword v2, v3, {SRD_WS}, s45 offen {SC}')
    a('s_mov_b64 exec, s[50:51]')
    a.label(f'L_sig_{tag}')


def wait_flags(a, tag, base_sreg_setup, nflags):
    a(f's_cmp_eq_u32 {S_WAVE}, 0')
    a(f's_cbranch_scc0 L_wf_{tag}_done')
    base_sreg_setup()
    a('s_mov_b32 s46, 0')
    if nflags == 16:
        a('v_and_b32 v2, 15, v1')
        a('v_lshlrev_b32 v2, 2, v2')
    else:
        a('v_lshlrev_b32 v2, 4, v1')
    a.label(f'L_wf_{tag}_loop')
    if nflags == 16:
        a(f'buffer_load_dword v4, v2, {SRD_WS}, s45 offen {SC}')
        a('s_waitcnt vmcnt(0)')
    else:
        a(f'buffer_load_dwordx4 v[4:7], v2, {SRD_WS}, s45 offen {SC}')
        a('s_waitcnt vmcnt(0)')
        a('v_and_b32 v4, v4, v5')
        a('v_and_b32 v6, v6, v7')
        a('v_and_b32 v4, v4, v6')
    a('v_cmp_eq_u32 vcc, 1, v4')
    a('s_add_u32 s46, s46, 1')
    a('s_nop 3')
    a('s_cmp_eq_u64 vcc, -1')
    a(f's_cbranch_scc1 L_wf_{tag}_done')
    a(f's_cmp_lt_u32 s46, {SPIN_MAX}')
    a(f's_cbranch_scc1 L_wf_{tag}_loop')
    a.label(f'L_wf_{tag}_done')
    a('s_barrier')


def p1_wdma(a, tag):
    mul, sh = magic_div(12, 191)
    tile_ids(a, 1)
    srd(a, SRD_W, 18, 512 * 1536 * 2)
    a(f's_cmp_eq_u32 {S_WAVE}, 0')
    a(f's_cbranch_scc1 L_p1w_skip{tag}')
    a(f's_sub_u32 s45, {S_WAVE}, 1')
    a('s_lshl_b32 s46, s45, 6')
    a('v_add_u32 v3, s46, v1')
    a(f'v_mul_u32_u24 v4, {mul}, v3')
    a(f'v_lshrrev_b32 v4, {sh}, v4')
    a('v_mul_u32_u24 v5, 12, v4')
    a('v_sub_u32 v5, v3, v5')
    a('v_lshrrev_b32 v6, 2, v5')
    a('v_and_b32 v5, 3, v5')
    a('v_mul_u32_u24 v3, 3072, v4')
    a('v_lshl_add_u32 v3, v6, 10, v3')
    a('v_lshl_add_u32 v3, v5, 4, v3')
    a(f's_lshl_b32 s46, {S_CB}, 6')
    a('s_lshl_b32 s47, s45, 10')
    a(f's_add_u32 s47, s47, {WB}')
    a('s_mov_b32 s48, 0')
    a.label(f'L_p1w_loop{tag}')
    a('s_mov_b32 m0, s47')
    a('s_add_u32 s47, s47, 3072')
    a(f'buffer_load_dwordx4 v3, {SRD_W}, s46 offen lds')
    a('s_add_u32 s46, s46, 49152')
    a('s_add_u32 s48, s48, 1')
    a('s_cmp_lt_u32 s48, 32')
    a(f's_cbranch_scc1 L_p1w_loop{tag}')
    a.label(f'L_p1w_skip{tag}')


def p2_wdma(a, tag):
    tile_ids(a, 2)
    srd(a, SRD_W, 22, 512 * 512 * 2)
    a(f's_cmp_eq_u32 {S_WAVE}, 0')
    a(f's_cbranch_scc1 L_p2w_skip{tag}')
    a('v_lshrrev_b32 v3, 4, v1')
    a('v_bfe_u32 v4, v1, 2, 2')
    a('v_xor_b32 v4, v4, v3')
    a('v_and_b32 v5, 3, v1')
    a('v_lshlrev_b32 v3, 10, v3')
    a('v_lshl_add_u32 v3, v4, 6, v3')
    a('v_lshl_add_u32 v3, v5, 4, v3')
    a(f's_sub_u32 s48, {S_WAVE}, 1')
    a(f's_lshl_b32 s46, {S_CB}, 8')
    a('s_lshl_b32 s47, s48, 12')
    a('s_add_u32 s46, s46, s47')
    a('s_lshl_b32 s47, s48, 10')
    a(f's_add_u32 s47, s47, {WB}')
    a.label(f'L_p2w_loop{tag}')
    a('s_mov_b32 m0, s47')
    a('s_add_u32 s47, s47, 3072')
    a(f'buffer_load_dwordx4 v3, {SRD_W}, s46 offen lds')
    a('s_add_u32 s46, s46, 12288')
    a('s_add_u32 s48, s48, 3')
    a('s_cmp_lt_u32 s48, 128')
    a(f's_cbranch_scc1 L_p2w_loop{tag}')
    a.label(f'L_p2w_skip{tag}')


def p3_wdma(a, tag):
    mul, sh = magic_div(14, 191)
    tile_ids(a, 3)
    srd(a, SRD_W, 26, 512 * 1792 * 2)
    a(f's_cmp_eq_u32 {S_WAVE}, 0')
    a(f's_cbranch_scc1 L_p3w_skip{tag}')
    a(f's_sub_u32 s48, {S_WAVE}, 1')
    a('s_lshl_b32 s46, s48, 6')
    a('v_add_u32 v3, s46, v1')
    a(f'v_mul_u32_u24 v4, {mul}, v3')
    a(f'v_lshrrev_b32 v4, {sh}, v4')
    a('v_mul_u32_u24 v5, 14, v4')
    a('v_sub_u32 v5, v3, v5')
    a('v_mul_u32_u24 v3, 3584, v4')
    a('v_lshl_add_u32 v3, v5, 4, v3')
    a(f's_mul_i32 s46, {S_CB}, 224')
    a('s_lshl_b32 s47, s48, 10')
    a(f's_add_u32 s47, s47, {WB}')
    a.label(f'L_p3w_loop{tag}')
    a('s_mov_b32 m0, s47')
    a('s_add_u32 s47, s47, 3072')
    a(f'buffer_load_dwordx4 v3, {SRD_W}, s46 offen lds')
    a('v_add_u32 v5, 10, v5')
    a(f'v_add_u32 v3, {13*3584+160}, v3')
    a('v_cmp_le_u32 vcc, 14, v5')
    a('v_subrev_u32 v4, 14, v5')
    a('v_cndmask_b32 v5, v5, v4, vcc')
    a(f'v_add_u32 v4, {3584-224}, v3')
    a('v_cndmask_b32 v3, v3, v4, vcc')
    a('s_add_u32 s48, s48, 3')
    a('s_cmp_lt_u32 s48, 112')
    a(f's_cbranch_scc1 L_p3w_loop{tag}')
    a.label(f'L_p3w_skip{tag}')


P4_PRE = 19
P4_REG = P4_PRE * 2048


def p4_pattern(a, dst):
    a(f'v_lshrrev_b32 v{dst}, 3, v1')
    a('v_bfe_u32 v4, v1, 2, 1')
    a('v_bfe_u32 v5, v1, 4, 1')
    a('v_xor_b32 v4, v4, v5')
    a('v_and_b32 v5, 3, v1')
    a(f'v_lshlrev_b32 v{dst}, 10, v{dst}')
    a(f'v_lshl_add_u32 v{dst}, v4, 6, v{dst}')
    a(f'v_lshl_add_u32 v{dst}, v5, 4, v{dst}')


def p4_wdma(a, tag):
    tile_ids(a, 4)
    srd(a, SRD_W, 28, 1792 * 512 * 2)
    a(f's_cmp_eq_u32 {S_WAVE}, 0')
    a(f's_cbranch_scc1 L_p4w_skip{tag}')
    p4_pattern(a, 3)
    a(f's_sub_u32 s48, {S_WAVE}, 1')
    a(f's_lshl_b32 s46, {S_CB}, 7')
    a('s_lshl_b32 s47, s48, 13')
    a('s_add_u32 s46, s46, s47')
    a('s_lshl_b32 s47, s48, 10')
    a(f's_add_u32 s47, s47, {WB}')
    a.label(f'L_p4w_loop{tag}')
    for q in range(4):
        a(f's_add_u32 m0, s47, {q*P4_REG}')
        a(f's_add_u32 s49, s46, {448*q*1024}')
        a(f'buffer_load_dwordx4 v3, {SRD_W}, s49 offen lds')
    a('s_add_u32 s47, s47, 3072')
    a('s_add_u32 s46, s46, 24576')
    a('s_add_u32 s48, s48, 3')
    a(f's_cmp_lt_u32 s48, {2*P4_PRE}')
    a(f's_cbranch_scc1 L_p4w_loop{tag}')
    a.label(f'L_p4w_skip{tag}')


def p0(a):
    a(f's_cmp_eq_u32 {S_WAVE}, 0')
    a('s_cbranch_scc0 L_p0_done')
    srd(a, SRD_O, 16, 0x200000)
    a('v_and_b32 v2, 7, v1')
    a('v_lshrrev_b32 v3, 3, v1')
    a('v_lshlrev_b32 v4, 10, v2')
    a('v_lshl_add_u32 v4, v3, 5, v4')
    a('s_lshl_b32 s45, s2, 13')
    X = 16
    for it in range(4):
        for h in range(2):
            a(f'buffer_load_dwordx4 {vr(X+8*it+4*h,4)}, v4, {SRD_O}, s45 offen offset:{it*256+h*16}')
    for i in range(4):
        a(f'v_mov_b32 v{8+i}, 0')
    a('v_lshlrev_b32 v5, 4, v1')
    a('s_mov_b64 s[50:51], exec')
    a('s_lshl_b32 s46, s2, 5')
    a(f's_add_u32 s46, s46, {WS_FL}')
    a('s_mov_b64 exec, 3')
    a(f'buffer_store_dwordx4 v[8:11], v5, {SRD_WS}, s46 offen {SC}')
    a('s_mul_i32 s46, s2, 544')
    a(f's_add_u32 s46, s46, {WS_KV}')
    a('s_mov_b32 exec_lo, -1')
    a('s_mov_b32 exec_hi, 3')
    a(f'buffer_store_dwordx4 v[8:11], v5, {SRD_WS}, s46 offen {SC}')
    a('s_mov_b64 exec, s[50:51]')
    ONES = 13
    a(f'v_mov_b32 v{ONES}, 0x3f803f80')
    for i in range(4):
        a(f'v_mov_b32 v{48+i}, 0')
    a('v_lshlrev_b32 v6, 10, v3')
    a('v_lshl_add_u32 v6, v2, 4, v6')
    a('s_lshr_b32 s46, s2, 2')
    a('s_and_b32 s47, s2, 3')
    a('s_lshl_b32 s48, s46, 15')
    a('s_lshl_b32 s49, s47, 7')
    a('s_add_u32 s48, s48, s49')
    a(f's_add_u32 s48, s48, {WS_LAYER + WS_XB}')
    for it in range(4):
        a(f's_waitcnt vmcnt({2 + 2*(3-it) + 2*it})')
        b = X + 8 * it
        s, q = (48, 49) if it < 2 else (50, 51)
        for j in range(8):
            a(f'v_dot2c_f32_bf16 v{s}, v{b+j}, v{ONES}')
            a(f'v_dot2c_f32_bf16 v{q}, v{b+j}, v{b+j}')
        a(f'v_swap_b32 v{b+2}, v{b+4}')
        a(f'v_swap_b32 v{b+3}, v{b+5}')
        a(f'buffer_store_dwordx4 {vr(b,4)}, v6, {SRD_WS}, s48 offen {SC}')
        a(f'buffer_store_dwordx4 {vr(b+4,4)}, v6, {SRD_WS}, s48 offen offset:512 {SC}')
        a('s_add_u32 s48, s48, 8192')
    a('v_lshlrev_b32 v6, 6, v2')
    a('v_lshl_add_u32 v6, v3, 3, v6')
    a('s_lshl_b32 s48, s46, 12')
    a('s_lshl_b32 s49, s47, 9')
    a('s_add_u32 s48, s48, s49')
    a(f's_add_u32 s48, s48, {WS_LAYER + WS_STB}')
    a(f'buffer_store_dwordx2 v[48:49], v6, {SRD_WS}, s48 offen {SC}')
    a(f'buffer_store_dwordx2 v[50:51], v6, {SRD_WS}, s48 offen offset:2048 {SC}')
    a('s_waitcnt vmcnt(0)')
    srd(a, SRD_O, 32, 256)
    a('v_mov_b32 v2, 1')
    a('v_mov_b32 v3, s2')
    a('s_mov_b64 exec, 1')
    a(f'buffer_store_byte v2, v3, {SRD_O}, 0 offen {SC}')
    a('s_mov_b64 exec, s[50:51]')
    a('v_lshlrev_b32 v2, 2, v1')
    a('s_mov_b32 s46, 0')
    a.label('L_p0_poll')
    a(f'buffer_load_dword v4, v2, {SRD_O}, 0 offen {SC}')
    a('s_waitcnt vmcnt(0)')
    a('v_cmp_eq_u32 vcc, 0x01010101, v4')
    a('s_add_u32 s46, s46, 1')
    a('s_nop 3')
    a('s_cmp_eq_u64 vcc, -1')
    a('s_cbranch_scc1 L_p0_done')
    a(f's_cmp_lt_u32 s46, {SPIN_MAX}')
    a('s_cbranch_scc1 L_p0_poll')
    a.label('L_p0_done')
    a('s_barrier')


def load_stats(a, dst, voff, soff):
    for q in range(4):
        a(f'buffer_load_dwordx4 {vr(dst+4*q,4)}, v{voff}, {SRD_WS}, {soff} offen offset:{16*q} {SC}')


def sum_stats(a, S):
    for k in (4, 2, 1):
        for i in range(k):
            a(f'v_pk_add_f32 v[{S+2*i}:{S+2*i+1}], v[{S+2*i}:{S+2*i+1}], v[{S+2*(i+k)}:{S+2*(i+k)+1}]')


def finish_stats(a, SUM, SQ, NMEAN, RSTD):
    a(f'v_mul_f32 v{NMEAN}, 0xbb000000, v{SUM}')
    a(f'v_mul_f32 v{RSTD}, 0x3b000000, v{SQ}')
    a(f'v_fma_f32 v{RSTD}, -v{NMEAN}, v{NMEAN}, v{RSTD}')
    a(f'v_max_f32 v{RSTD}, 0, v{RSTD}')
    a(f'v_add_f32 v{RSTD}, 0x3727c5ac, v{RSTD}')
    a(f'v_rsq_f32 v{RSTD}, v{RSTD}')


def store_stats(a, OUT, T, soff_setup):
    a(f'v_pk_add_f32 v[{T}:{T+1}], v[{OUT}:{OUT+1}], v[{OUT+2}:{OUT+3}]')
    a(f'v_pk_mul_f32 v[{T+2}:{T+3}], v[{OUT}:{OUT+1}], v[{OUT}:{OUT+1}]')
    a(f'v_pk_fma_f32 v[{T+2}:{T+3}], v[{OUT+2}:{OUT+3}], v[{OUT+2}:{OUT+3}], v[{T+2}:{T+3}]')
    for i in range(2, 8):
        a(f'v_pk_add_f32 v[{T}:{T+1}], v[{T}:{T+1}], v[{OUT+2*i}:{OUT+2*i+1}]')
        a(f'v_pk_fma_f32 v[{T+2}:{T+3}], v[{OUT+2*i}:{OUT+2*i+1}], v[{OUT+2*i}:{OUT+2*i+1}], v[{T+2}:{T+3}]')
    a(f'v_add_f32 v{T}, v{T}, v{T+1}')
    a(f'v_add_f32 v{T+1}, v{T+2}, v{T+3}')
    a(f'v_mov_b32 v{T+2}, v{T}')
    a(f'v_mov_b32 v{T+3}, v{T+1}')
    a(f'v_permlane32_swap_b32 v{T}, v{T+2}')
    a(f'v_permlane32_swap_b32 v{T+1}, v{T+3}')
    a(f'v_add_f32 v{T}, v{T}, v{T+2}')
    a(f'v_add_f32 v{T+1}, v{T+1}, v{T+3}')


def softmax16(a, P, c, outp, outn, T):
    mx, w, t2, bp, bn = T, T + 1, T + 2, T + 4, T + 6
    EP, EN = T + 8, T + 16
    a(f'v_max3_f32 v{mx}, v{P}, v{P+1}, v{P+2}')
    a(f'v_max3_f32 v{w}, -v{P}, -v{P+1}, -v{P+2}')
    a(f'v_max3_f32 v{mx}, v{mx}, v{P+3}, v{P+4}')
    a(f'v_max3_f32 v{w}, v{w}, -v{P+3}, -v{P+4}')
    a(f'v_max3_f32 v{mx}, v{mx}, v{P+5}, v{P+6}')
    a(f'v_max3_f32 v{w}, v{w}, -v{P+5}, -v{P+6}')
    a(f'v_max_f32 v{mx}, v{mx}, v{P+7}')
    a(f'v_max_f32 v{w}, v{w}, -v{P+7}')
    allreduce32_pair(a, mx, w, t2, 'v_max_f32')
    a(f'v_mul_f32 v{bp}, v{mx}, -v{c}')
    a(f'v_mul_f32 v{bn}, v{t2}, -v{c}')
    for i in range(4):
        a(f'v_pk_fma_f32 v[{EP+2*i}:{EP+2*i+1}], v[{P+2*i}:{P+2*i+1}], v[{c}:{c+1}], v[{bp}:{bp+1}] op_sel:[0,0,0] op_sel_hi:[1,0,0]')
        a(f'v_pk_fma_f32 v[{EN+2*i}:{EN+2*i+1}], v[{P+2*i}:{P+2*i+1}], v[{c}:{c+1}], v[{bn}:{bn+1}] op_sel:[0,0,0] op_sel_hi:[1,0,0] neg_lo:[0,1,0] neg_hi:[0,1,0]')
    for i in range(8):
        a(f'v_exp_f32 v{EP+i}, v{EP+i}')
    for i in range(8):
        a(f'v_exp_f32 v{EN+i}, v{EN+i}')
    sp, sn = T, T + 2
    a(f'v_pk_add_f32 v[{sp}:{sp+1}], v[{EP}:{EP+1}], v[{EP+2}:{EP+3}]')
    a(f'v_pk_add_f32 v[{bp}:{bp+1}], v[{EP+4}:{EP+5}], v[{EP+6}:{EP+7}]')
    a(f'v_pk_add_f32 v[{sn}:{sn+1}], v[{EN}:{EN+1}], v[{EN+2}:{EN+3}]')
    a(f'v_pk_add_f32 v[{bn}:{bn+1}], v[{EN+4}:{EN+5}], v[{EN+6}:{EN+7}]')
    a(f'v_pk_add_f32 v[{sp}:{sp+1}], v[{sp}:{sp+1}], v[{bp}:{bp+1}]')
    a(f'v_pk_add_f32 v[{sn}:{sn+1}], v[{sn}:{sn+1}], v[{bn}:{bn+1}]')
    a(f'v_add_f32 v{sp}, v{sp}, v{sp+1}')
    a(f'v_add_f32 v{sn}, v{sn}, v{sn+1}')
    a(f'v_permlane32_swap_b32 v{sp}, v{sn}')
    a(f'v_add_f32 v{sp}, v{sp}, v{sn}')
    a(f'v_rcp_f32 v{sp}, v{sp}')
    a(f'v_mov_b32 v{sn}, v{sp}')
    a(f'v_permlane32_swap_b32 v{sp}, v{sn}')
    for i in range(4):
        a(f'v_pk_mul_f32 v[{EP+2*i}:{EP+2*i+1}], v[{EP+2*i}:{EP+2*i+1}], v[{sp}:{sp+1}] op_sel:[0,0] op_sel_hi:[1,0]')
        a(f'v_pk_mul_f32 v[{EN+2*i}:{EN+2*i+1}], v[{EN+2*i}:{EN+2*i+1}], v[{sn}:{sn+1}] op_sel:[0,0] op_sel_hi:[1,0]')
    for i in range(4):
        a(f'v_cvt_pk_bf16_f32 v{outp+i}, v{EP+2*i}, v{EP+2*i+1}')
        a(f'v_cvt_pk_bf16_f32 v{outn+i}, v{EN+2*i}, v{EN+2*i+1}')


def p1_body(a):
    ACCQ, ACCK, ACCV = 16, 32, 48
    WF = 64
    XF = 0
    CSQ, CSK, CSV, ONES = 10, 11, 12, 13
    STT = 100
    tile_ids(a, 1)
    a('v_and_b32 v14, 31, v1')
    a('v_lshrrev_b32 v15, 5, v1')
    a(f's_lshl_b32 s45, {S_RB}, 2')
    a(f's_add_u32 s59, s45, {S_WAVE}')
    a('s_lshl_b32 s46, s59, 15')
    a(f's_add_u32 s46, s46, {S_LOFF}')
    a(f's_add_u32 s46, s46, {WS_XB}')
    a('v_lshlrev_b32 v2, 4, v1')
    for c in range(32):
        a(f'buffer_load_dwordx4 {ar(XF+4*c,4)}, v2, {SRD_WS}, s46 offen offset:{(c&3)*1024} {SC}')
        if (c & 3) == 3 and c < 31:
            a('s_add_u32 s46, s46, 4096')
    a('v_lshlrev_b32 v3, 6, v1')
    a('s_lshl_b32 s46, s59, 12')
    a(f's_add_u32 s46, s46, {S_LOFF}')
    load_stats(a, STT, 3, 's46')
    a('v_bfe_u32 v3, v1, 4, 1')
    a('v_bfe_u32 v4, v1, 2, 2')
    a('v_and_b32 v5, 3, v1')
    a('v_lshlrev_b32 v5, 3, v5')
    a('v_lshl_add_u32 v5, v3, 5, v5')
    a('v_lshl_add_u32 v6, v15, 2, v4')
    a('v_mul_u32_u24 v6, 192, v6')
    a('v_add_u32 v6, v6, v5')
    a(f'v_add_u32 v6, {WB}, v6')
    for r in (CSQ, CSK, CSV):
        a(f'v_mov_b32 v{r}, 0')
    a(f'v_mov_b32 v{ONES}, 0x3f803f80')
    a('s_waitcnt vmcnt(36)')
    a('s_barrier')
    stamp(a)

    def reads(c):
        b = WF + 12 * (c % 3)
        off = (c & 15) * 3072
        for part in range(3):
            a(f'ds_read_b64_tr_b16 v[{b+4*part}:{b+4*part+1}], v6 offset:{off+64*part}')
            a(f'ds_read_b64_tr_b16 v[{b+4*part+2}:{b+4*part+3}], v6 offset:{off+64*part+1536}')

    reads(0)
    reads(1)
    for c in range(32):
        b = WF + 12 * (c % 3)
        if c + 2 < 32:
            if c + 2 == 16:
                a('v_add_u32 v6, 49152, v6')
            reads(c + 2)
        a(f's_waitcnt vmcnt({31-c+4}) lgkmcnt({12 if c+2 < 32 else (6 if c+1 < 32 else 0)})')
        x = ar(XF + 4 * c, 4)
        first = (c == 0)
        MF32(a, vr(ACCK, 16), vr(b + 4, 4), x, '0' if first else vr(ACCK, 16))
        MF32(a, vr(ACCQ, 16), vr(b, 4), x, '0' if first else vr(ACCQ, 16))
        MF32(a, vr(ACCV, 16), x, vr(b + 8, 4), '0' if first else vr(ACCV, 16))
        a(f's_cmp_eq_u32 s58, {c & 3}')
        a(f's_cbranch_scc0 L_p1_nocs_{c}')
        for part, cs in enumerate((CSQ, CSK, CSV)):
            for j in range(4):
                a(f'v_dot2c_f32_bf16 v{cs}, v{b+4*part+j}, v{ONES}')
        a.label(f'L_p1_nocs_{c}')
    stamp(a)
    NMEAN, RSTD, CSC = 116, 118, 120
    a(f's_cmp_eq_u32 {S_LAYER}, 0')
    a('s_cbranch_scc0 L_p1_cs_ready')
    a(f'v_mov_b32 v3, v{CSQ}'); a(f'v_mov_b32 v4, v{CSK}'); a(f'v_mov_b32 v5, v{CSV}')
    a(f'v_permlane32_swap_b32 v{CSQ}, v3'); a(f'v_permlane32_swap_b32 v{CSK}, v4'); a(f'v_permlane32_swap_b32 v{CSV}, v5')
    a(f'v_add_f32 v{CSQ}, v{CSQ}, v3'); a(f'v_add_f32 v{CSK}, v{CSK}, v4'); a(f'v_add_f32 v{CSV}, v{CSV}, v5')
    a(f's_mul_i32 s46, {S_WAVE}, 384')
    a('v_lshlrev_b32 v3, 2, v14')
    a('v_add_u32 v4, s46, v3')
    a(f'ds_write_b32 v4, v{CSQ} offset:{L_TMP}')
    a(f'ds_write_b32 v4, v{CSK} offset:{L_TMP+128}')
    a(f'ds_write_b32 v4, v{CSV} offset:{L_TMP+256}')
    a('s_waitcnt lgkmcnt(0)')
    a('s_barrier')
    for w in range(4):
        for p in range(3):
            a(f'ds_read_b32 v{64+3*w+p}, v3 offset:{L_TMP+384*w+128*p}')
    a('s_waitcnt lgkmcnt(0)')
    for p in range(3):
        a(f'v_add_f32 v{64+p}, v{64+p}, v{67+p}')
        a(f'v_add_f32 v{70+p}, v{70+p}, v{73+p}')
        a(f'v_add_f32 v{64+p}, v{64+p}, v{70+p}')
        a(f'ds_write_b32 v3, v{64+p} offset:{L_CSQ+128*p}')
    a('s_branch L_p1_cs_go')
    a.label('L_p1_cs_ready')
    a('s_barrier')
    a.label('L_p1_cs_go')
    a('s_waitcnt vmcnt(0)')
    sum_stats(a, STT)
    allreduce32_pair(a, STT, STT + 1, STT + 2, 'v_add_f32')
    finish_stats(a, STT, STT + 2, NMEAN, RSTD)
    a(f'v_mul_f32 v{CSC}, {LOG2E:#x}, v{RSTD}')
    a(f's_lshl_b32 s46, {S_WAVE}, 8')
    a('v_lshlrev_b32 v3, 2, v14')
    a('v_add_u32 v4, s46, v3')
    a(f'ds_write_b32 v4, v{NMEAN} offset:{L_ST}')
    a(f'ds_write_b32 v4, v{RSTD} offset:{L_ST+128}')
    CQ, CK = 64, 80
    SM, SR = 128, 144
    CV = 122
    a('v_lshlrev_b32 v4, 4, v15')
    a('s_waitcnt lgkmcnt(0)')
    for q in range(4):
        a(f'ds_read_b128 {vr(CQ+4*q,4)}, v4 offset:{L_CSQ+32*q}')
    for q in range(4):
        a(f'ds_read_b128 {vr(CK+4*q,4)}, v4 offset:{L_CSQ+128+32*q}')
    a(f'ds_read_b32 v{CV}, v3 offset:{L_CSQ+256}')
    a('v_add_u32 v5, s46, v4')
    WA, A1, A2 = 160, 164, 168
    a('v_bfe_u32 v7, v1, 4, 1')
    a('v_bfe_u32 v6, v1, 2, 2')
    a('v_lshl_add_u32 v6, v15, 2, v6')
    a('v_lshlrev_b32 v6, 5, v6')
    a('v_lshl_add_u32 v6, v7, 9, v6')
    a('v_and_b32 v8, 3, v1')
    a('v_lshl_add_u32 v6, v8, 3, v6')
    a(f'ds_read_b64_tr_b16 v[{WA}:{WA+1}], v6 offset:{L_WPHI}')
    a(f'ds_read_b64_tr_b16 v[{WA+2}:{WA+3}], v6 offset:{L_WPHI+256}')
    for q in range(4):
        a(f'ds_read_b128 {vr(SM+4*q,4)}, v5 offset:{L_ST+32*q}')
    a('v_cmp_eq_u32 s[50:51], 0, v7')
    ID0, ID1 = 172, 176
    a('v_lshlrev_b32 v6, 3, v15')
    a('v_sub_u32 v6, v14, v6')
    a('s_waitcnt lgkmcnt(4)')
    for q in range(4):
        a(f'ds_read_b128 {vr(SR+4*q,4)}, v5 offset:{L_ST+128+32*q}')
    QP, KP, VP = 180, 188, 196
    for acc, C in ((ACCK, CK), (ACCQ, CQ)):
        for i in range(8):
            a(f'v_pk_fma_f32 v[{acc+2*i}:{acc+2*i+1}], v[{C+2*i}:{C+2*i+1}], v[{NMEAN}:{NMEAN+1}], v[{acc+2*i}:{acc+2*i+1}] op_sel:[0,0,0] op_sel_hi:[1,0,1]')
    for j in range(4):
        a(f'v_cndmask_b32 v{A1+j}, 0, v{WA+j}, s[50:51]')
        a(f'v_cndmask_b32 v{A2+j}, v{WA+j}, 0, s[50:51]')
    for acc, Pk in ((ACCK, KP), (ACCQ, QP)):
        for i in range(8):
            a(f'v_cvt_pk_bf16_f32 v{Pk+i}, v{acc+2*i}, v{acc+2*i+1}')
    PQ, PK = 64, 80
    MF32(a, vr(PK, 16), vr(A1, 4), vr(KP, 4), '0')
    MF32(a, vr(PQ, 16), vr(A1, 4), vr(QP, 4), '0')
    MF32(a, vr(PK, 16), vr(A2, 4), vr(KP + 4, 4), vr(PK, 16))
    MF32(a, vr(PQ, 16), vr(A2, 4), vr(QP + 4, 4), vr(PQ, 16))
    for cc, ID in ((0, ID0), (1, ID1)):
        a(f'v_subrev_u32 v7, {16*cc}, v6')
        a('v_and_b32 v8, 1, v7')
        a('v_lshlrev_b32 v8, 4, v8')
        a('v_mov_b32 v9, 0x3f80')
        a('v_lshlrev_b32 v8, v8, v9')
        a('v_lshrrev_b32 v7, 1, v7')
        for jp in range(4):
            a(f'v_cmp_eq_u32 vcc, {jp}, v7')
            a(f'v_cndmask_b32 v{ID+jp}, 0, v8, vcc')
    a('s_waitcnt lgkmcnt(0)')
    for i in range(8):
        a(f'v_pk_fma_f32 v[{ACCV+2*i}:{ACCV+2*i+1}], v[{SM+2*i}:{SM+2*i+1}], v[{CV}:{CV+1}], v[{ACCV+2*i}:{ACCV+2*i+1}] op_sel:[0,0,0] op_sel_hi:[1,0,1]')
    for i in range(8):
        a(f'v_pk_mul_f32 v[{ACCV+2*i}:{ACCV+2*i+1}], v[{ACCV+2*i}:{ACCV+2*i+1}], v[{SR+2*i}:{SR+2*i+1}]')
    for i in range(8):
        a(f'v_cvt_pk_bf16_f32 v{VP+i}, v{ACCV+2*i}, v{ACCV+2*i+1}')
    stamp(a)
    FK, FQ, T = 204, 220, 128
    for hh in range(2):
        softmax16(a, PK + 8 * hh, CSC, FK + 8 * hh, FK + 8 * hh + 4, T)
    TD = 16
    for hh in range(2):
        d = TD + 16 * hh
        MF32(a, vr(d, 16), vr(FK + 8 * hh, 4), vr(ID0, 4), '0')
        MF32(a, vr(d, 16), vr(FK + 8 * hh + 4, 4), vr(ID1, 4), vr(d, 16))
    softmax16(a, PQ, CSC, FQ, FQ + 4, T)
    TB, VA = 236, 160
    for hh in range(2):
        d = TD + 16 * hh
        for i in range(8):
            a(f'v_cvt_pk_bf16_f32 v{TB+8*hh+i}, v{d+2*i}, v{d+2*i+1}')
    for i in range(8):
        a(f'v_cndmask_b32 v{VA+i}, v{ONES}, v{VP+i}, s[50:51]')
        a(f'v_cndmask_b32 v{VA+8+i}, v{VP+i}, v{ONES}, s[50:51]')
    KVD = 16
    for hh in range(2):
        d = KVD + 16 * hh
        MF32(a, vr(d, 16), vr(VA + 8 * hh, 4), vr(TB + 8 * hh, 4), '0')
        MF32(a, vr(d, 16), vr(VA + 8 * hh + 4, 4), vr(TB + 8 * hh + 4, 4), vr(d, 16))
    softmax16(a, PQ + 8, CSC, FQ + 8, FQ + 12, T)
    a('s_lshl_b32 s46, s59, 16')
    a(f's_lshl_b32 s47, {S_CB}, 12')
    a('s_add_u32 s46, s46, s47')
    a(f's_add_u32 s46, s46, {S_LOFF}')
    a(f's_add_u32 s46, s46, {WS_PHIQ}')
    a('v_lshlrev_b32 v3, 4, v1')
    for i in range(4):
        a(f'buffer_store_dwordx4 {vr(FQ+4*i,4)}, v3, {SRD_WS}, s46 offen offset:{1024*i} {SC}')
    a('v_bfe_u32 v4, v14, 4, 1')
    a('v_bfe_u32 v5, v14, 2, 1')
    a('v_lshl_add_u32 v4, v4, 1, v5')
    a('v_bfe_u32 v5, v14, 3, 1')
    a('v_lshl_add_u32 v4, v4, 1, v5')
    a('v_mul_u32_u24 v4, 272, v4')
    a('v_and_b32 v5, 3, v14')
    a('v_lshl_add_u32 v4, v5, 2, v4')
    a(f's_mul_i32 s46, {S_WAVE}, {2*KV_HEAD}')
    a(f's_add_u32 s46, s46, {WB}')
    a('v_add_u32 v4, s46, v4')
    a('v_lshl_add_u32 v5, v15, 6, v4')
    for hh in range(2):
        d = KVD + 16 * hh + 8 * hh
        for r in range(8):
            row = (r & 3) + 8 * (r >> 2)
            a(f'ds_write_b32 v5, v{d+r} offset:{hh*KV_HEAD + row*16}')
        z = KVD + 16 * hh + (8 if hh == 0 else 0)
        a(f'ds_write_b32 v4, v{z} offset:{hh*KV_HEAD + 256}')
    a('s_waitcnt lgkmcnt(0)')
    a('s_barrier')
    stamp(a)
    a('v_lshlrev_b32 v4, 2, v0')
    a(f'v_add_u32 v5, {WB}, v4')
    for i in range(5):
        for w in range(4):
            a(f'ds_read_b32 v{64+4*i+w}, v5 offset:{w*2*KV_HEAD + 1024*i}')
    a(f's_mul_i32 s46, {S_LAYER}, {KV_LAYER}')
    a(f's_mul_i32 s47, {S_CB}, {2*KV_HEAD}')
    a('s_add_u32 s46, s46, s47')
    a(f's_add_u32 s46, s46, {WS_KV}')
    for i in range(5):
        a(f's_waitcnt lgkmcnt({min(15, 4*(4-i))})')
        b = 64 + 4 * i
        a(f'v_add_f32 v{b}, v{b}, v{b+1}')
        a(f'v_add_f32 v{b+2}, v{b+2}, v{b+3}')
        a(f'v_add_f32 v{b}, v{b}, v{b+2}')
        if i < 4:
            a(f'buffer_atomic_add_f32 v{b}, v4, {SRD_WS}, s46 offen offset:{1024*i}')
        else:
            a(f's_cmp_eq_u32 {S_WAVE}, 0')
            a('s_cbranch_scc0 L_p1_noat')
            a('s_add_u32 s46, s46, 4096')
            a(f'buffer_atomic_add_f32 v{b}, v4, {SRD_WS}, s46 offen')
            a.label('L_p1_noat')


def reduce4(a, ACC, OUT, region, tag, base):
    a('v_lshlrev_b32 v3, 4, v1')
    a(f'v_add_u32 v3, {base}, v3')
    a(f's_mul_i32 s46, {S_WAVE}, {region}')
    a('v_add_u32 v4, s46, v3')
    for w in range(4):
        if w < 3:
            a(f's_cmp_eq_u32 {S_WAVE}, {w}')
            a(f's_cbranch_scc0 L_red{tag}_n{w}')
        for q in range(4):
            if q == w:
                continue
            slot = q - (1 if q > w else 0)
            for rg in range(4):
                a(f'ds_write_b128 v4, {vr(ACC+16*q+4*rg,4)} offset:{slot*4096+rg*1024}')
        for i in range(16):
            a(f'v_mov_b32 v{OUT+i}, v{ACC+16*w+i}')
        if w < 3:
            a(f's_branch L_red{tag}_done')
            a.label(f'L_red{tag}_n{w}')
    a.label(f'L_red{tag}_done')
    a('s_waitcnt lgkmcnt(0)')
    a('s_barrier')
    for k in range(1, 4):
        a(f's_add_u32 s46, {S_WAVE}, {k}')
        a('s_and_b32 s46, s46, 3')
        a(f's_cmp_gt_u32 {S_WAVE}, s46')
        a(f's_subb_u32 s47, {S_WAVE}, 0')
        a(f's_mul_i32 s46, s46, {region}')
        a('s_lshl_b32 s47, s47, 12')
        a('s_add_u32 s46, s46, s47')
        a('v_add_u32 v4, s46, v3')
        for rg in range(4):
            a(f'ds_read_b128 {vr(OUT+16*k+4*rg,4)}, v4 offset:{rg*1024}')
    for k in range(1, 4):
        a(f's_waitcnt lgkmcnt({4*(3-k)})')
        for i in range(8):
            a(f'v_pk_add_f32 v[{OUT+2*i}:{OUT+2*i+1}], v[{OUT+2*i}:{OUT+2*i+1}], v[{OUT+16*k+2*i}:{OUT+16*k+2*i+1}]')


def add_packed_residual(a, OUT, R, T):
    for i in range(8):
        a(f'v_lshlrev_b32 v{T}, 16, v{R[i]}')
        a(f'v_and_b32 v{T+1}, 0xffff0000, v{R[i]}')
        a(f'v_pk_add_f32 v[{OUT+2*i}:{OUT+2*i+1}], v[{OUT+2*i}:{OUT+2*i+1}], v[{T}:{T+1}]')


def emit_stats_store(a, OUT, sb_sreg, p_sreg, ws_off_expr):
    T = 8
    store_stats(a, OUT, T, None)
    a(f's_lshl_b32 s46, {sb_sreg}, 12')
    a(f's_lshr_b32 s47, {p_sreg}, 3')
    a('s_lshl_b32 s47, s47, 11')
    a('s_add_u32 s46, s46, s47')
    a(f's_and_b32 s47, {p_sreg}, 7')
    a('s_lshl_b32 s47, s47, 3')
    a('s_add_u32 s46, s46, s47')
    ws_off_expr()
    a('v_lshlrev_b32 v12, 6, v14')
    a('s_mov_b64 s[50:51], exec')
    a('s_mov_b32 exec_hi, 0')
    a(f'buffer_store_dwordx2 v[{T}:{T+1}], v12, {SRD_WS}, s46 offen {SC}')
    a('s_mov_b64 exec, s[50:51]')


def p2_body(a):
    ACC = 16
    OD = 80
    OP = 112
    KV = 128
    PHI = 0
    WFA = 64
    XR = 120
    tile_ids(a, 2)
    a('v_and_b32 v14, 31, v1')
    a('v_lshrrev_b32 v15, 5, v1')
    a('v_min_u32 v2, 16, v14')
    a('v_lshlrev_b32 v2, 4, v2')
    a('v_mul_u32_u24 v3, 272, v15')
    a('v_add_u32 v2, v2, v3')
    a(f's_mul_i32 s46, {S_LAYER}, {KV_LAYER}')
    a(f's_mul_i32 s47, {S_WAVE}, {8*KV_HEAD}')
    a('s_add_u32 s46, s46, s47')
    a(f's_add_u32 s46, s46, {WS_KV}')
    a('v_lshlrev_b32 v3, 4, v1')
    a(f's_lshl_b32 s47, {S_RB}, 16')
    a(f's_lshl_b32 s48, {S_WAVE}, 14')
    a('s_add_u32 s47, s47, s48')
    a(f's_add_u32 s47, s47, {S_LOFF}')
    a(f's_add_u32 s47, s47, {WS_PHIQ}')
    for hl in range(8):
        for q in range(4):
            a(f'buffer_load_dwordx4 {vr(KV+16*hl+4*q,4)}, v2, {SRD_WS}, s46 offen offset:{q*544} {SC}')
        for cc in range(2):
            a(f'buffer_load_dwordx4 {ar(PHI+(hl*2+cc)*4,4)}, v3, {SRD_WS}, s47 offen offset:{cc*1024} {SC}')
        if hl < 7:
            a(f's_add_u32 s46, s46, {KV_HEAD}')
            a('s_add_u32 s47, s47, 2048')
    a(f's_lshl_b32 s46, {S_RB}, 15')
    a(f's_lshl_b32 s47, {S_CB}, 13')
    a('s_add_u32 s46, s46, s47')
    a(f's_lshl_b32 s47, {S_WAVE}, 11')
    a('s_add_u32 s46, s46, s47')
    a(f's_add_u32 s46, s46, {S_LOFF}')
    a(f's_add_u32 s46, s46, {WS_XB}')
    a(f'buffer_load_dwordx4 {vr(XR,4)}, v3, {SRD_WS}, s46 offen {SC}')
    a(f'buffer_load_dwordx4 {vr(XR+4,4)}, v3, {SRD_WS}, s46 offen offset:1024 {SC}')
    NRES = 2
    a('v_bfe_u32 v4, v1, 2, 2')
    a('v_lshl_add_u32 v5, v15, 2, v4')
    a('v_lshlrev_b32 v5, 8, v5')
    a('v_lshl_add_u32 v5, v4, 6, v5')
    a('v_bfe_u32 v6, v1, 4, 1')
    a('v_lshl_add_u32 v5, v6, 5, v5')
    a('v_and_b32 v6, 3, v1')
    a('v_lshl_add_u32 v5, v6, 3, v5')
    a(f's_lshl_b32 s46, {S_WAVE}, 15')
    a(f's_add_u32 s46, s46, {WB}')
    a('v_add_u32 v5, s46, v5')
    for nt in range(4):
        a(f'v_xor_b32 v{6+nt}, {nt*64}, v5')
    a('s_waitcnt vmcnt(50)')
    a('s_barrier')
    stamp(a)

    def wreads(hl, buf):
        for nt in range(4):
            b = WFA + 16 * buf + 4 * nt
            a(f'ds_read_b64_tr_b16 a[{b}:{b+1}], v{6+nt} offset:{hl*4096}')
            a(f'ds_read_b64_tr_b16 a[{b+2}:{b+3}], v{6+nt} offset:{hl*4096+2048}')

    def head_o(hl):
        buf = hl & 1
        k = KV + 16 * hl
        for cc in range(2):
            for jp in range(4):
                a(f'v_cvt_pk_bf16_f32 v{k+8*cc+jp}, v{k+8*cc+2*jp}, v{k+8*cc+2*jp+1}')
        d = vr(OD + 16 * buf, 16)
        MF32(a, d, vr(k, 4), ar(PHI + hl * 8, 4), '0')
        MF32(a, d, vr(k + 8, 4), ar(PHI + hl * 8 + 4, 4), d)

    def head_norm(hl):
        buf = hl & 1
        d = OD + 16 * buf
        a(f'v_add_f32 v{d+8}, 0x358637bd, v{d+8}')
        a(f'v_rcp_f32 v{d+8}, v{d+8}')
        for i in range(4):
            a(f'v_pk_mul_f32 v[{d+2*i}:{d+2*i+1}], v[{d+2*i}:{d+2*i+1}], v[{d+8}:{d+9}] op_sel:[0,0] op_sel_hi:[1,0]')
        for i in range(4):
            a(f'v_cvt_pk_bf16_f32 v{OP+4*buf+i}, v{d+2*i}, v{d+2*i+1}')

    def head_gemm(hl):
        buf = hl & 1
        for nt in range(4):
            d = vr(ACC + 16 * nt, 16)
            MF32(a, d, ar(WFA + 16 * buf + 4 * nt, 4), vr(OP + 4 * buf, 4), '0' if hl == 0 else d)

    a(f's_waitcnt vmcnt({6*7+NRES})')
    head_o(0)
    wreads(0, 0)
    for hl in range(8):
        if hl < 7:
            a(f's_waitcnt vmcnt({6*(7-hl-1)+NRES})')
            head_o(hl + 1)
        head_norm(hl)
        if hl < 7:
            a('s_waitcnt lgkmcnt(0)')
            wreads(hl + 1, (hl + 1) & 1)
        else:
            a('s_waitcnt lgkmcnt(0)')
        head_gemm(hl)
    stamp(a)
    OUT = 128
    a.nop(12)
    reduce4(a, ACC, OUT, 32768, 'p2', WB)
    a('s_waitcnt vmcnt(0)')
    add_packed_residual(a, OUT, list(range(XR, XR + 8)), 12)
    for i in range(8):
        a(f'v_cvt_pk_bf16_f32 v{16+i}, v{OUT+2*i}, v{OUT+2*i+1}')
    for dst, src in zip(range(24, 32), (16, 17, 20, 21, 18, 19, 22, 23)):
        a(f'v_mov_b32 v{dst}, v{src}')
    a('v_lshrrev_b32 v4, 4, v14')
    a('v_lshlrev_b32 v4, 14, v4')
    a('v_and_b32 v5, 15, v14')
    a('v_lshl_add_u32 v4, v5, 4, v4')
    a('v_lshl_add_u32 v4, v15, 8, v4')
    a(f's_lshl_b32 s46, {S_RB}, 15')
    a(f's_lshl_b32 s52, {S_CB}, 2')
    a(f's_add_u32 s52, s52, {S_WAVE}')
    a('s_lshl_b32 s47, s52, 10')
    a('s_add_u32 s46, s46, s47')
    a(f's_add_u32 s46, s46, {S_LOFF}')
    a(f's_add_u32 s46, s46, {WS_XA}')
    a(f'buffer_store_dwordx4 v[24:27], v4, {SRD_WS}, s46 offen {SC}')
    a(f'buffer_store_dwordx4 v[28:31], v4, {SRD_WS}, s46 offen offset:512 {SC}')

    def off():
        a(f's_add_u32 s46, s46, {S_LOFF}')
        a(f's_add_u32 s46, s46, {WS_STA}')
    emit_stats_store(a, OUT, S_RB, 's52', off)


def p3_body(a):
    ACC = 16
    WF = 72
    XF = 0
    ONES = 13
    STT = 128
    CS = [2, 3, 4, 5, 7, 12, 14]
    tile_ids(a, 3)
    a('v_lshlrev_b32 v2, 4, v1')
    a(f's_lshl_b32 s46, {S_RB}, 3')
    a(f's_lshl_b32 s47, {S_WAVE}, 1')
    a('s_add_u32 s46, s46, s47')
    a('s_lshl_b32 s46, s46, 14')
    a(f's_add_u32 s46, s46, {S_LOFF}')
    a(f's_add_u32 s46, s46, {WS_XA}')
    a('s_add_u32 s47, s46, 16384')
    for c in range(16):
        a(f'buffer_load_dwordx4 {ar(XF+8*c,4)}, v2, {SRD_WS}, s46 offen offset:{(c&3)*1024} {SC}')
        a(f'buffer_load_dwordx4 {ar(XF+8*c+4,4)}, v2, {SRD_WS}, s47 offen offset:{(c&3)*1024} {SC}')
        if (c & 3) == 3 and c < 15:
            a('s_add_u32 s46, s46, 4096')
            a('s_add_u32 s47, s47, 4096')
    a('v_and_b32 v3, 15, v1')
    a('v_lshrrev_b32 v4, 5, v1')
    a('v_lshl_add_u32 v3, v4, 4, v3')
    a('v_bfe_u32 v4, v1, 4, 1')
    a('v_lshl_add_u32 v3, v4, 5, v3')
    a('v_lshlrev_b32 v3, 6, v3')
    a(f's_lshl_b32 s46, {S_RB}, 2')
    a(f's_add_u32 s59, s46, {S_WAVE}')
    a('s_lshl_b32 s46, s59, 12')
    a(f's_add_u32 s46, s46, {S_LOFF}')
    a(f's_add_u32 s46, s46, {WS_STA}')
    load_stats(a, STT, 3, 's46')
    a('v_lshrrev_b32 v4, 4, v1')
    a('v_bfe_u32 v5, v1, 2, 2')
    a('v_lshl_add_u32 v5, v4, 2, v5')
    a('v_mul_u32_u24 v6, 224, v5')
    a('v_and_b32 v5, 3, v1')
    a('v_lshl_add_u32 v6, v5, 3, v6')
    a(f'v_add_u32 v6, {WB}, v6')
    a(f'v_mov_b32 v{ONES}, 0x3f803f80')
    for r in CS:
        a(f'v_mov_b32 v{r}, 0')
    a('s_waitcnt vmcnt(36)')
    a('s_barrier')
    stamp(a)

    def reads(c, t0, t1):
        buf = c & 1
        for t in range(t0, t1):
            b = WF + 28 * buf + 4 * t
            off = (c & 7) * 32 * 224 + t * 32
            a(f'ds_read_b64_tr_b16 v[{b}:{b+1}], v6 offset:{off}')
            a(f'ds_read_b64_tr_b16 v[{b+2}:{b+3}], v6 offset:{off+16*224}')

    reads(0, 0, 7)
    for c in range(16):
        buf = c & 1
        a(f's_waitcnt vmcnt({2*(15-c)+4}) lgkmcnt(0)')
        if c < 15 and ((c + 1) & 7) == 0:
            a('v_add_u32 v6, 57344, v6')
        for t in range(7):
            b = WF + 28 * buf + 4 * t
            if c < 15:
                reads(c + 1, t, t + 1)
            for u in range(2):
                d = vr(ACC + (t * 2 + u) * 4, 4)
                MF16(a, d, vr(b, 4), ar(XF + 8 * c + 4 * u, 4), '0' if c == 0 else d)
        a(f's_cmp_eq_u32 s58, {c & 3}')
        a(f's_cbranch_scc0 L_p3_nocs_{c}')
        for t in range(7):
            b = WF + 28 * buf + 4 * t
            for j in range(4):
                a(f'v_dot2c_f32_bf16 v{CS[t]}, v{b+j}, v{ONES}')
        a.label(f'L_p3_nocs_{c}')
    stamp(a)
    a(f's_cmp_eq_u32 {S_LAYER}, 0')
    a('s_cbranch_scc0 L_p3_cs_ready')
    a('v_mov_b32 v15, 0')
    grp = [(CS[0], CS[1], CS[2], CS[3]), (CS[4], CS[5], CS[6], 15)]
    for (x0, x1, x2, x3) in grp:
        a(f'v_permlane16_swap_b32 v{x0}, v{x1}')
        a(f'v_permlane16_swap_b32 v{x2}, v{x3}')
        a(f'v_add_f32 v{x0}, v{x0}, v{x1}')
        a(f'v_add_f32 v{x2}, v{x2}, v{x3}')
        a(f'v_permlane32_swap_b32 v{x0}, v{x2}')
        a(f'v_add_f32 v{x0}, v{x0}, v{x2}')
    a('v_lshlrev_b32 v3, 2, v1')
    a(f's_lshl_b32 s46, {S_WAVE}, 9')
    a('v_add_u32 v5, s46, v3')
    a(f'ds_write_b32 v5, v{grp[0][0]} offset:{L_TMP}')
    a(f'ds_write_b32 v5, v{grp[1][0]} offset:{L_TMP+256}')
    a('s_waitcnt lgkmcnt(0)')
    a('s_barrier')
    for w in range(4):
        for h in range(2):
            a(f'ds_read_b32 v{72+2*w+h}, v3 offset:{L_TMP+512*w+256*h}')
    a('s_waitcnt lgkmcnt(0)')
    for h in range(2):
        a(f'v_add_f32 v{72+h}, v{72+h}, v{74+h}')
        a(f'v_add_f32 v{76+h}, v{76+h}, v{78+h}')
        a(f'v_add_f32 v{72+h}, v{72+h}, v{76+h}')
        a(f'ds_write_b32 v3, v{72+h} offset:{L_CS1+256*h}')
    a.label('L_p3_cs_ready')
    a('s_waitcnt vmcnt(0)')
    sum_stats(a, STT)
    a(f'v_mov_b32 v{STT+2}, v{STT}')
    a(f'v_mov_b32 v{STT+3}, v{STT+1}')
    a(f'v_permlane16_swap_b32 v{STT}, v{STT+2}')
    a(f'v_permlane16_swap_b32 v{STT+1}, v{STT+3}')
    a(f'v_add_f32 v{STT}, v{STT}, v{STT+2}')
    a(f'v_add_f32 v{STT+1}, v{STT+1}, v{STT+3}')
    NM = [132, 134]; RS = [136, 138]; NL = [140, 142]
    finish_stats(a, STT, STT + 1, NM[0], RS[0])
    a(f'v_mov_b32 v{NM[1]}, v{NM[0]}')
    a(f'v_mov_b32 v{RS[1]}, v{RS[0]}')
    a(f'v_permlane32_swap_b32 v{NM[0]}, v{NM[1]}')
    a(f'v_permlane32_swap_b32 v{RS[0]}, v{RS[1]}')
    for u in range(2):
        a(f'v_mul_f32 v{NL[u]}, {(LOG2E | 0x80000000):#x}, v{RS[u]}')
    CSR = 144
    a('v_lshrrev_b32 v4, 4, v1')
    a('v_lshlrev_b32 v4, 4, v4')
    a('s_waitcnt lgkmcnt(0)')
    for t in range(7):
        a(f'ds_read_b128 {vr(CSR+4*t,4)}, v4 offset:{L_CS1+64*t}')
    a('v_and_b32 v5, 15, v1')
    a('v_lshrrev_b32 v7, 5, v1')
    a('v_lshl_add_u32 v5, v7, 4, v5')
    a('v_bfe_u32 v7, v1, 4, 1')
    a('v_lshl_add_u32 v5, v7, 5, v5')
    a('v_lshlrev_b32 v5, 4, v5')
    a('s_mul_i32 s46, s59, 112')
    a(f's_mul_i32 s47, {S_CB}, 7')
    a('s_add_u32 s46, s46, s47')
    a('s_lshl_b32 s46, s46, 10')
    a(f's_add_u32 s46, s46, {S_LOFF}')
    a(f's_add_u32 s46, s46, {WS_H}')
    a('s_add_u32 s47, s46, 4096')
    E = 176
    ONEF = 192
    a(f'v_mov_b32 v{ONEF}, 1.0')
    PKD = 196
    for t in range(7):
        a(f's_waitcnt lgkmcnt({6-t})')
        Et = E + 8 * (t & 1)
        for u in range(2):
            d = ACC + (t * 2 + u) * 4
            for i in range(2):
                pr = f'v[{d+2*i}:{d+2*i+1}]'
                e = Et + 4 * u + 2 * i
                er = f'v[{e}:{e+1}]'
                a(f'v_pk_fma_f32 {pr}, v[{CSR+4*t+2*i}:{CSR+4*t+2*i+1}], v[{NM[u]}:{NM[u]+1}], {pr} op_sel:[0,0,0] op_sel_hi:[1,0,1]')
                a(f'v_pk_mul_f32 {er}, {pr}, v[{NL[u]}:{NL[u]+1}] op_sel:[0,0] op_sel_hi:[1,0]')
                a(f'v_pk_mul_f32 {pr}, {pr}, v[{RS[u]}:{RS[u]+1}] op_sel:[0,0] op_sel_hi:[1,0]')
        for i in range(8):
            a(f'v_exp_f32 v{Et+i}, v{Et+i}')
        for i in range(4):
            a(f'v_pk_add_f32 v[{Et+2*i}:{Et+2*i+1}], v[{Et+2*i}:{Et+2*i+1}], v[{ONEF}:{ONEF+1}] op_sel:[0,0] op_sel_hi:[1,0]')
        for i in range(8):
            a(f'v_rcp_f32 v{Et+i}, v{Et+i}')
        for u in range(2):
            d = ACC + (t * 2 + u) * 4
            for i in range(2):
                a(f'v_pk_mul_f32 v[{d+2*i}:{d+2*i+1}], v[{d+2*i}:{d+2*i+1}], v[{Et+4*u+2*i}:{Et+4*u+2*i+1}]')
            for i in range(2):
                a(f'v_cvt_pk_bf16_f32 v{PKD+4*t+2*u+i}, v{d+2*i}, v{d+2*i+1}')
        p = PKD + 4 * t
        a(f'v_permlane32_swap_b32 v{p}, v{p+2}')
        a(f'v_permlane32_swap_b32 v{p+1}, v{p+3}')
        off = t * 1024
        if off >= 4096:
            a(f'buffer_store_dwordx4 {vr(p,4)}, v5, {SRD_WS}, s47 offen offset:{off-4096} {SC}')
        else:
            a(f'buffer_store_dwordx4 {vr(p,4)}, v5, {SRD_WS}, s46 offen offset:{off} {SC}')


def p4_body(a):
    ACC = 16
    WF = 80
    HF = 0
    tile_ids(a, 4)
    a('v_and_b32 v14, 31, v1')
    a('v_lshrrev_b32 v15, 5, v1')
    a('v_lshlrev_b32 v2, 4, v1')
    a(f's_lshl_b32 s46, {S_RB}, 1')
    a('s_mul_i32 s46, s46, 112')
    a(f's_mul_i32 s47, {S_WAVE}, 28')
    a('s_add_u32 s46, s46, s47')
    a('s_lshl_b32 s46, s46, 10')
    a(f's_add_u32 s46, s46, {S_LOFF}')
    a(f's_add_u32 s46, s46, {WS_H}')
    a(f's_add_u32 s47, s46, {112*1024}')
    for st in range(28):
        a(f'buffer_load_dwordx4 {ar(HF+st*8,4)}, v2, {SRD_WS}, s46 offen offset:{(st&3)*1024} {SC}')
        a(f'buffer_load_dwordx4 {ar(HF+st*8+4,4)}, v2, {SRD_WS}, s47 offen offset:{(st&3)*1024} {SC}')
        if (st & 3) == 3 and st < 27:
            a('s_add_u32 s46, s46, 4096')
            a('s_add_u32 s47, s47, 4096')
    p4_pattern(a, 3)
    a(f's_mul_i32 s49, {S_WAVE}, {448*1024}')
    a(f's_lshl_b32 s47, {S_CB}, 7')
    a('s_add_u32 s49, s49, s47')
    a(f's_add_u32 s49, s49, {16*P4_PRE*1024}')
    a(f's_mul_i32 s53, {S_WAVE}, {P4_REG}')
    a(f's_add_u32 s53, s53, {WB}')
    a('v_bfe_u32 v4, v1, 2, 2')
    a('v_lshl_add_u32 v5, v15, 2, v4')
    a('v_lshlrev_b32 v5, 7, v5')
    a('v_bfe_u32 v4, v1, 3, 1')
    a('v_lshl_add_u32 v5, v4, 6, v5')
    a('v_bfe_u32 v4, v1, 4, 1')
    a('v_lshl_add_u32 v5, v4, 5, v5')
    a('v_and_b32 v4, 3, v1')
    a('v_lshl_add_u32 v5, v4, 3, v5')
    a('v_add_u32 v6, s53, v5')
    a('v_xor_b32 v7, 64, v6')
    a('s_waitcnt vmcnt(56)')
    a('s_barrier')
    stamp(a)

    def reads(st):
        slot = st % P4_PRE
        b = WF + 8 * (st % 3)
        for nt in range(2):
            a(f'ds_read_b64_tr_b16 v[{b+4*nt}:{b+4*nt+1}], v{6+nt} offset:{slot*2048}')
            a(f'ds_read_b64_tr_b16 v[{b+4*nt+2}:{b+4*nt+3}], v{6+nt} offset:{slot*2048+1024}')

    NLATE = 28 - P4_PRE
    reads(0)
    reads(1)
    for st in range(28):
        if st < P4_PRE:
            a(f's_waitcnt vmcnt({2*(27-st) + 2*min(st, NLATE)})')
        if st + 2 < 28:
            if st + 2 >= P4_PRE:
                a(f's_waitcnt vmcnt({2*(NLATE-1-(st+2-P4_PRE))})')
            reads(st + 2)
            a('s_waitcnt lgkmcnt(8)')
        elif st + 1 < 28:
            a('s_waitcnt lgkmcnt(4)')
        else:
            a('s_waitcnt lgkmcnt(0)')
        b = WF + 8 * (st % 3)
        for nt in range(2):
            for sb in range(2):
                d = vr(ACC + (nt * 2 + sb) * 16, 16)
                MF32(a, d, vr(b + 4 * nt, 4), ar(HF + st * 8 + 4 * sb, 4), '0' if st == 0 else d)
        if st < NLATE:
            for k in range(2):
                a(f's_add_u32 m0, s53, {st*2048 + k*1024}')
                a(f'buffer_load_dwordx4 v3, {SRD_W}, s49 offen lds')
                a('s_add_u32 s49, s49, 8192')
    stamp(a)
    a('v_lshrrev_b32 v4, 4, v14')
    a('v_lshlrev_b32 v4, 14, v4')
    a('v_and_b32 v5, 15, v14')
    a('v_lshl_add_u32 v4, v5, 4, v4')
    a('v_lshl_add_u32 v4, v15, 8, v4')
    a(f's_and_b32 s47, {S_WAVE}, 1')
    a(f's_lshl_b32 s46, {S_RB}, 1')
    a('s_add_u32 s54, s46, s47')
    a('s_lshl_b32 s46, s54, 15')
    a(f's_lshr_b32 s47, {S_WAVE}, 1')
    a(f's_lshl_b32 s48, {S_CB}, 1')
    a('s_add_u32 s52, s48, s47')
    a('s_lshl_b32 s47, s52, 10')
    a('s_add_u32 s46, s46, s47')
    a(f's_add_u32 s46, s46, {S_LOFF}')
    a(f's_add_u32 s46, s46, {WS_XA}')
    a(f'buffer_load_dwordx4 v[120:123], v4, {SRD_WS}, s46 offen {SC}')
    a(f'buffer_load_dwordx4 v[124:127], v4, {SRD_WS}, s46 offen offset:512 {SC}')
    OUT = 128
    a.nop(12)
    reduce4(a, ACC, OUT, P4_REG, 'p4', WB)
    a('s_waitcnt vmcnt(0)')
    add_packed_residual(a, OUT, [120, 121, 124, 125, 122, 123, 126, 127], 12)
    for i in range(8):
        a(f'v_cvt_pk_bf16_f32 v{16+i}, v{OUT+2*i}, v{OUT+2*i+1}')
    a(f's_cmp_eq_u32 {S_LAYER}, 0')
    a('s_cbranch_scc0 L_p4_out')
    a('v_lshlrev_b32 v4, 4, v1')
    a('s_lshl_b32 s46, s54, 15')
    a('s_lshl_b32 s47, s52, 11')
    a('s_add_u32 s46, s46, s47')
    a(f's_add_u32 s46, s46, {2*WS_LAYER + WS_XB}')
    a(f'buffer_store_dwordx4 v[16:19], v4, {SRD_WS}, s46 offen {SC}')
    a(f'buffer_store_dwordx4 v[20:23], v4, {SRD_WS}, s46 offen offset:1024 {SC}')

    def off():
        a(f's_add_u32 s46, s46, {2*WS_LAYER + WS_STB}')
    emit_stats_store(a, OUT, 's54', 's52', off)
    a('s_branch L_p4_done')
    a.label('L_p4_out')
    srd(a, SRD_O, 30, 0x200000)
    for qq in range(2):
        b = 16 + 4 * qq
        a(f'v_permlane32_swap_b32 v{b}, v{b+2}')
        a(f'v_permlane32_swap_b32 v{b+1}, v{b+3}')
    a('v_lshlrev_b32 v4, 10, v14')
    a('v_lshl_add_u32 v4, v15, 4, v4')
    a('s_lshl_b32 s46, s54, 15')
    a('s_lshl_b32 s47, s52, 6')
    a('s_add_u32 s46, s46, s47')
    a(f'buffer_store_dwordx4 v[16:19], v4, {SRD_O}, s46 offen')
    a(f'buffer_store_dwordx4 v[20:23], v4, {SRD_O}, s46 offen offset:32')
    a('s_endpgm')
    a.label('L_p4_done')


def gen():
    a = Asm()
    a('s_cmp_ge_u32 s2, 256')
    a('s_cbranch_scc1 L_exit')
    a('s_load_dwordx16 s[16:31], s[0:1], 0')
    a('s_load_dwordx4 s[32:35], s[0:1], 64')
    a(f's_mov_b32 {S_LAYER}, 0')
    a(f's_mov_b32 {S_LOFF}, {WS_LAYER}')
    a('v_lshrrev_b32 v2, 6, v0')
    a('v_and_b32 v1, 63, v0')
    a(f'v_readfirstlane_b32 {S_WAVE}, v2')
    a('s_waitcnt lgkmcnt(0)')
    a('s_mov_b32 s12, s34')
    a('s_mov_b32 s13, s35')
    a(f's_mov_b32 s14, {WS_SIZE}')
    a('s_mov_b32 s15, 0x20000')
    stamp(a)
    tile_ids(a, 1)
    a(f's_cmp_eq_u32 {S_WAVE}, 1')
    a('s_cbranch_scc0 L_nowphi')
    srd(a, SRD_O, 20, 16384)
    a('v_lshlrev_b32 v3, 4, v1')
    a(f's_lshl_b32 s46, {S_CB}, 10')
    a(f's_mov_b32 m0, {L_WPHI}')
    a('s_nop 0')
    a(f'buffer_load_dwordx4 v3, {SRD_O}, s46 offen lds')
    a.label('L_nowphi')
    p1_wdma(a, 'a')
    p0(a)
    stamp(a)
    a.label('L_layer')
    a(f's_cmp_eq_u32 {S_LAYER}, 0')
    a(f's_cselect_b32 s58, {S_WAVE}, 99')
    p1_body(a)
    stamp(a)
    signal(a, 1, 4, 'p1')
    p2_wdma(a, '')

    def b2():
        a(f's_lshl_b32 s45, {S_LAYER}, 12')
        a(f's_add_u32 s45, s45, {WS_FL}')
    wait_flags(a, 'p2', b2, 256)
    stamp(a)
    p2_body(a)
    stamp(a)
    signal(a, 2, 2, 'p2')
    p3_wdma(a, '')

    def b3():
        a(f's_lshl_b32 s45, {S_RB}, 6')
        a(f's_lshl_b32 s46, {S_LAYER}, 12')
        a('s_add_u32 s45, s45, s46')
        a(f's_add_u32 s45, s45, {WS_FL + 1024}')
    wait_flags(a, 'p3', b3, 16)
    stamp(a)
    p3_body(a)
    stamp(a)
    signal(a, 3, 4, 'p3')
    p4_wdma(a, '')

    def b4():
        a(f's_lshr_b32 s45, {S_RB}, 1')
        a('s_lshl_b32 s45, s45, 6')
        a(f's_lshl_b32 s46, {S_LAYER}, 12')
        a('s_add_u32 s45, s45, s46')
        a(f's_add_u32 s45, s45, {WS_FL + 2048}')
    wait_flags(a, 'p4', b4, 16)
    stamp(a)
    p4_body(a)
    if STAMPS:
        stamp(a)
    signal(a, 4, 3, 'p4')
    p1_wdma(a, 'b')

    def b1():
        a(f's_lshl_b32 s45, {S_RB}, 6')
        a(f's_add_u32 s45, s45, {WS_FL + 3072}')
    wait_flags(a, 'p1', b1, 16)
    if STAMPS:
        stamp(a)
        stamp_flush(a)
    a(f's_mov_b32 {S_LAYER}, 1')
    a(f's_mov_b32 {S_LOFF}, {2*WS_LAYER}')
    a('s_branch L_layer')
    a.label('L_exit')
    a('s_endpgm')
    body = a.finalize()
    name = NAME + '_kernel'
    hdr = open(os.path.join(os.path.dirname(os.path.abspath(__file__)), 'header.txt')).read()
    out = hdr + f'; @launch grid=(256,1,1) block=(256,1,1) lds={LDS_TOTAL}\n'
    out += '.amdgcn_target "amdgcn-amd-amdhsa--gfx950"\n.text\n'
    out += f'.globl {name}\n.p2align 8\n.type {name},@function\n{name}:\n{body}'
    out += f""".section .rodata,"a"
.p2align 6
.amdhsa_kernel {name}
  .amdhsa_next_free_vgpr 512
  .amdhsa_next_free_sgpr 100
  .amdhsa_accum_offset 256
  .amdhsa_group_segment_fixed_size 0
  .amdhsa_kernarg_size 80
  .amdhsa_user_sgpr_count 2
  .amdhsa_user_sgpr_kernarg_segment_ptr 1
  .amdhsa_system_sgpr_workgroup_id_x 1
.end_amdhsa_kernel
"""
    return out


if __name__ == '__main__':
    dst = sys.argv[1] if len(sys.argv) > 1 else f'cdna_kernels/{NAME}.s'
    src = gen()
    open(dst, 'w').write(src)
    print('wrote', dst, len(src), 'bytes')
```
